```python
import torch

def _softmax(x, axis=-1):
    return torch.softmax(x, dim=axis)
def _gelu(x):
    return torch.nn.functional.gelu(x, approximate="tanh")
def _silu(x):
    return torch.nn.functional.silu(x)
def _sigmoid(x):
    return torch.sigmoid(x)
def _layernorm(x, axis=-1, eps=1e-5):
    m = x.mean(dim=axis, keepdim=True)
    v = x.var(dim=axis, keepdim=True, unbiased=False)
    return (x - m) / torch.sqrt(v + eps)
def _scatter_add(tgt, idx, src, axis=0):
    return tgt.clone().index_add_(axis, idx, src)
def _segment_sum(src, seg, n):
    out = torch.zeros((n,) + src.shape[1:], dtype=src.dtype)
    return out.index_add_(0, seg, src)
def _pad(x, pw):
    flat = tuple(v for pair in reversed(pw) for v in pair)
    return torch.nn.functional.pad(x, flat)

kernel_name = 'sequential_preLN__mha_block_cached__geglu_ffn__decode'

def setup_inputs():

    _w = (lambda a: (lambda t: t.to(torch.bfloat16) if t.is_floating_point() else t)(torch.as_tensor(a)))
    def _A_setup():
        B, Sq, D = 2, 1, 448
        H, Sk, Dh = 16, 8192, 256
        return {
            "x": _w((lambda *s: torch.randn(*s, dtype=torch.bfloat16) * 0.05)(B, Sq, D)),
            "k_cache": _w((lambda *s: torch.randn(*s, dtype=torch.bfloat16) * 3.2)(B, H, Sk, Dh)),
            "v_cache": _w((lambda *s: torch.randn(*s, dtype=torch.bfloat16) * 0.4)(B, H, Sk, Dh)),
            "wq": _w((lambda *s: torch.randn(*s, dtype=torch.bfloat16) * 3.2)(D, H * Dh) * (D ** -0.5)),
            "wo": _w((lambda *s: torch.randn(*s, dtype=torch.bfloat16) * 0.4)(H * Dh, D) * ((H * Dh) ** -0.5)),
        }
    _A_in = _A_setup()

    def _B_setup():
        B, S, D, F = 2, 1, 448, 1792
        return {
            "x": _w((lambda *s: torch.randn(*s, dtype=torch.bfloat16) * 0.05)(B, S, D)),
            "w_gate": _w((lambda *s: torch.randn(*s, dtype=torch.bfloat16) * 0.05)(D, F)),
            "w_up": _w((lambda *s: torch.randn(*s, dtype=torch.bfloat16) * 0.05)(D, F)),
            "w_down": _w((lambda *s: torch.randn(*s, dtype=torch.bfloat16) * 0.05)(F, D)),
        }
    _B_in = _B_setup()

    return {
        "A_x": _A_in["x"],
        "A_k_cache": _A_in["k_cache"],
        "A_v_cache": _A_in["v_cache"],
        "A_wq": _A_in["wq"],
        "A_wo": _A_in["wo"],
        "B_x": _B_in["x"],
        "B_w_gate": _B_in["w_gate"],
        "B_w_up": _B_in["w_up"],
        "B_w_down": _B_in["w_down"],
    }

def reference(A_x, A_k_cache, A_v_cache, A_wq, A_wo, B_x, B_w_gate, B_w_up, B_w_down):
    def _A_ref(x, k_cache, v_cache, wq, wo):
        B, Sq, D = x.shape
        H, Dh = 16, 256
        q = (lambda x, *d: x.permute(*d))((x @ wq).reshape(B, Sq, H, Dh), 0, 2, 1, 3)
        scores = torch.einsum("bhqd,bhkd->bhqk", q, k_cache) * (Dh ** -0.5)
        p = _softmax(scores, axis=-1)
        o = torch.einsum("bhqk,bhkd->bhqd", p, v_cache)
        return (lambda x, *d: x.permute(*d))(o, 0, 2, 1, 3).reshape(B, Sq, H * Dh) @ wo

    def _B_ref(x, w_gate, w_up, w_down):
        return (_gelu(x @ w_gate) * (x @ w_up)) @ w_down

    x = A_x
    h = x + _A_ref(_layernorm(x, axis=-1), A_k_cache, A_v_cache, A_wq, A_wo)
    h2 = h + _B_ref(_layernorm(h, axis=-1), B_w_gate, B_w_up, B_w_down)
    return h2
```

```python
import re

TRANS = ("v_exp_", "v_log_", "v_rcp_", "v_rsq_", "v_sqrt_", "v_sin_", "v_cos_")


def regs_of(tok):
    tok = tok.strip()
    tok = tok.lstrip("-")
    m = re.fullmatch(r"abs\((.*)\)", tok) or re.fullmatch(r"\|(.*)\|", tok)
    if m:
        tok = m.group(1)
    m = re.fullmatch(r"([vsa])(\d+)", tok)
    if m:
        return {(m.group(1), int(m.group(2)))}
    m = re.fullmatch(r"([vsa])\[(\d+):(\d+)\]", tok)
    if m:
        return {(m.group(1), i) for i in range(int(m.group(2)), int(m.group(3)) + 1)}
    if tok in ("vcc", "vcc_lo", "vcc_hi"):
        return {("s", "vcc")}
    if tok in ("exec", "exec_lo", "exec_hi"):
        return {("s", "exec")}
    if tok == "m0":
        return {("s", "m0")}
    return set()


class Ins:
    def __init__(self, text):
        self.text = text
        t = text.split(";")[0].strip()
        self.label = None
        self.op = None
        if not t:
            return
        if t.endswith(":"):
            self.label = t[:-1]
            return
        if t.startswith("."):
            return
        parts = t.split(None, 1)
        self.op = parts[0]
        rest = parts[1] if len(parts) > 1 else ""
        ops = []
        cur = ""
        depth = 0
        for ch in rest:
            if ch in "[(":
                depth += 1
            if ch in "])":
                depth -= 1
            if ch == "," and depth == 0:
                ops.append(cur)
                cur = ""
            else:
                cur += ch
        if cur.strip():
            ops.append(cur)
        self.mods = ""
        if ops:
            last = ops[-1].strip().split(None, 1)
            ops[-1] = last[0]
            self.mods = last[1] if len(last) > 1 else ""
        self.ops = [o.strip() for o in ops]
        op = self.op
        self.mfma = op.startswith("v_mfma")
        self.valu = op.startswith("v_") and not self.mfma
        self.trans = op.startswith(TRANS)
        self.dpp = "_dpp" in op
        self.permlane = op.startswith("v_permlane")
        self.rdlane = op.startswith(("v_readlane", "v_readfirstlane"))
        self.wrlane = op.startswith("v_writelane")
        self.vmem = op.startswith(("buffer_", "global_"))
        self.ds = op.startswith("ds_")
        self.salu = op.startswith("s_") and not op.startswith(("s_waitcnt", "s_nop", "s_barrier", "s_branch", "s_cbranch", "s_load", "s_mem", "s_endpgm", "s_setprio", "s_sleep"))
        self.ldsdma = self.vmem and (" lds" in " " + self.mods)
        R = [regs_of(o) for o in self.ops]
        allr = set().union(*R) if R else set()
        self.dst = set()
        self.src = set()
        self.srcC = set()
        self.stdata = set()
        if self.mfma:
            self.dst = R[0]
            self.src = R[1] | R[2]
            self.srcC = R[3]
            self.passes = 8 if "32x32" in op else 4
        elif self.permlane:
            self.dst = allr
            self.src = allr
        elif self.valu:
            self.dst = set(R[0])
            self.src = set().union(*R[1:]) if len(R) > 1 else set()
            if "_co_" in op or op.startswith("v_div_scale"):
                self.dst |= R[1]
                self.src = set().union(*R[2:])
            if op.startswith(("v_fmac", "v_dot2c", "v_writelane")) or self.dpp:
                self.src |= R[0]
            if op.startswith("v_cmpx"):
                self.dst |= {("s", "exec")}
        elif self.vmem:
            if op in ("buffer_inv", "buffer_wbl2"):
                pass
            elif "store" in op or "atomic" in op:
                self.src = allr
                di = 0 if op.startswith("buffer_") else 1
                if "x4" in op or "x3" in op:
                    self.stdata = R[di]
                if "atomic" in op and "sc0" in self.mods:
                    self.dst = R[0]
            elif self.ldsdma:
                self.src = allr | {("s", "m0")}
            else:
                self.dst = R[0]
                self.src = set().union(*R[1:])
        elif self.ds:
            if op.startswith(("ds_read", "ds_bpermute", "ds_permute", "ds_swizzle")) or "_rtn" in op:
                self.dst = R[0]
                self.src = set().union(*R[1:])
            else:
                self.src = allr
        elif self.salu:
            if op.startswith(("s_cmp", "s_bitcmp")):
                self.src = allr
            else:
                self.dst = R[0] if R else set()
                self.src = set().union(*R[1:]) if len(R) > 1 else set()
                if "saveexec" in op:
                    self.dst |= {("s", "exec")}

    def states(self):
        if self.op is None:
            return 0
        if self.op == "s_nop":
            return int(self.ops[0], 0) + 1
        return 1


def need(p, c):
    n = 0
    V = lambda s: {r for r in s if r[0] in "va"}
    S = lambda s: {r for r in s if r[0] == "s"}
    if p.valu:
        pv = V(p.dst)
        ps = S(p.dst)
        if pv:
            if c.dpp and pv & V(c.src):
                n = max(n, 2)
            if c.permlane and pv & V(c.src):
                n = max(n, 2)
            if c.rdlane and pv & V(c.src):
                n = max(n, 1)
            if c.mfma and pv & (c.src | c.srcC):
                n = max(n, 2)
            if p.trans and c.valu and not c.trans and pv & V(c.src):
                n = max(n, 1)
            if p.trans and c.valu and c.trans and pv & V(c.src):
                n = max(n, 1)
            if p.op.startswith("v_dot") and (c.valu or c.mfma) and pv & (V(c.src) | V(c.dst)):
                n = max(n, 3)
        if ps:
            if c.valu and ps & S(c.src):
                n = max(n, 4 if (c.rdlane or c.wrlane) else 2)
            if c.vmem and ps & S(c.src):
                n = max(n, 5)
            if ("s", "exec") in ps:
                if c.dpp:
                    n = max(n, 5)
                if c.mfma or c.rdlane or c.wrlane or c.permlane:
                    n = max(n, 4)
            if c.salu and ps & S(c.src):
                n = max(n, 1)
            if c.op.startswith(("s_cbranch_vcc",)) and ("s", "vcc") in ps:
                n = max(n, 1)
    if p.mfma:
        big = 8 if p.passes == 4 else 12
        if c.mfma:
            if p.dst & c.src:
                n = max(n, big)
            if p.dst & c.srcC and not (p.dst == c.srcC and p.passes == c.passes and p.op == c.op):
                n = max(n, big - 2)
            if p.dst & c.dst and not (p.dst & c.srcC):
                n = max(n, big)
        elif c.valu or c.vmem or c.ds:
            if p.dst & (c.src | c.dst):
                n = max(n, big)
            if c.valu and p.srcC & c.dst:
                n = max(n, 3 if p.passes == 4 else 7)
    if p.salu and ("s", "m0") in p.dst and c.ldsdma:
        n = max(n, 1)
    if p.stdata and (c.valu or c.mfma or c.ds or c.vmem) and p.stdata & c.dst:
        n = max(n, 2)
    return n


class Asm:
    def __init__(self):
        self.lines = []

    def __call__(self, text):
        for l in text.split("\n"):
            l = l.strip()
            if l:
                self.lines.append(l)

    def padded(self):
        out = []
        for l in self.lines:
            c = Ins(l)
            if c.op is not None:
                d = 0
                req = 0
                for p in reversed(out):
                    if p.op is None:
                        continue
                    if p.op in ("s_branch", "s_endpgm"):
                        break
                    k = need(p, c)
                    if k - d > req:
                        req = k - d
                    d += p.states()
                    if d > 14:
                        break
                if req > 0:
                    out.append(Ins(f"s_nop {req-1}"))
            out.append(c)
        lab = {x.label: i for i, x in enumerate(out) if x.label}
        for i, b in enumerate(out):
            if b.op and b.op.startswith(("s_branch", "s_cbranch")):
                t = lab[b.ops[0]]
                dc = 0
                for c in out[t:t + 40]:
                    if c.op is None:
                        continue
                    d = dc + 1
                    for p in reversed(out[:i]):
                        if p.op is None:
                            continue
                        if p.op in ("s_branch", "s_endpgm"):
                            break
                        if need(p, c) > d:
                            raise RuntimeError(f"hazard across branch {b.text}: {p.text} -> {c.text}")
                        d += p.states()
                        if d > 14:
                            break
                    dc += c.states()
                    if dc > 14 or c.op in ("s_branch", "s_endpgm"):
                        break
        return out

    def text(self):
        res = []
        for x in self.padded():
            t = x.text
            if x.op is not None:
                t = "    " + t
            res.append(t)
        return "\n".join(res) + "\n"
```

```python
import sys, math, struct
from asmlib import Asm

NAME = "sequential_preLN__mha_block_cached__geglu_ffn__decode"


def f2u(x):
    return struct.unpack("<I", struct.pack("<f", x))[0]


def hx(x):
    return "0x%08x" % (x & 0xFFFFFFFF)


WS_EPOCH = 0
WS_CL = 0x1000
WS_ML = 0x2000
WS_QX = 0x10000
WS_H1 = 0x50000
WS_H2 = 0x90000
WS_H3 = 0xA0000
WS_END = 0x110000
TS_OFF = 256 << 20
SENT = 0x7FD5A5A5
OOB = 0x7FF00000

RING = 8
L_WQ = 131072
L_MISC = L_WQ + 14336
L_FLAG = L_MISC
L_LN1 = L_MISC + 64
L_Q = L_LN1 + 1792
L_P = L_Q + 512
L_O = L_P + 2048
L_ST = L_O + 1024
L_LN2 = L_ST + 64
L_RED = L_LN2 + 2048
L_END = L_RED + 1024
LDS_BYTES = L_END


def gen(N=19, ts=False, spin_lds=1 << 22, spin_g=1 << 17, opts=()):
    A = Asm()
    a = A
    uid = [0]

    def lab(p):
        uid[0] += 1
        return f"L_{p}{uid[0]}"

    used_ts = {}

    def TS(slot):
        if ts:
            a(f"s_memrealtime s[{64+2*slot}:{65+2*slot}]\ns_waitcnt lgkmcnt(0)")

    def TS_store(slots):
        if not ts:
            return
        a("s_mov_b64 exec, 1")
        a(f"s_lshl_b32 s48, s2, 7\ns_add_u32 s48, s48, {TS_OFF}\nv_mov_b32 v2, 0")
        for s in slots:
            a(f"v_mov_b32 v4, s{64+2*s}\nv_mov_b32 v5, s{65+2*s}")
            a(f"buffer_store_dwordx2 v[4:5], v2, s[32:35], s48 offen offset:{8*s}")
        a("s_waitcnt vmcnt(0)\ns_mov_b64 exec, -1")

    def srd(d, p, size):
        a(f"s_mov_b32 s{d}, s{p}\ns_and_b32 s{d+1}, s{p+1}, 0xffff\ns_mov_b32 s{d+2}, {size}\ns_mov_b32 s{d+3}, 0x20000")

    def allreduce16(op, v):
        for m in ("quad_perm:[1,0,3,2]", "quad_perm:[2,3,0,1]", "row_half_mirror", "row_mirror"):
            for r in v:
                a(f"{op}_dpp v{r}, v{r}, v{r} {m} row_mask:0xf bank_mask:0xf")

    def xrow(op, v, tmp, which):
        for r, t in zip(v, tmp):
            a(f"v_mov_b32 v{t}, v{r}")
        for r, t in zip(v, tmp):
            a(f"v_permlane{which}_swap_b32 v{r}, v{t}")
        for r, t in zip(v, tmp):
            a(f"{op} v{r}, v{r}, v{t}")

    def rnd2(x, y, t):
        a(f"v_cvt_pk_bf16_f32 v{t}, v{x}, v{y}\nv_lshlrev_b32 v{x}, 16, v{t}\nv_and_b32 v{y}, 0xffff0000, v{t}")

    def rnd1(x):
        a(f"v_cvt_pk_bf16_f32 v{x}, v{x}, v{x}\nv_and_b32 v{x}, 0xffff0000, v{x}")

    def lds_wait_gt(off, sval, scache, vt):
        ok = lab("ok")
        lp = lab("lp")
        a(f"s_cmp_gt_i32 s{scache}, {sval}\ns_cbranch_scc1 {ok}")
        a(f"s_mov_b32 s29, {spin_lds}")
        a(f"{lp}:")
        a(f"ds_read_b32 v{vt}, v1 offset:{off}\ns_waitcnt lgkmcnt(0)\nv_readfirstlane_b32 s{scache}, v{vt}")
        a(f"s_cmp_gt_i32 s{scache}, {sval}\ns_cbranch_scc1 {ok}")
        a(f"s_sub_u32 s29, s29, 1\ns_cbranch_scc0 {lp}\ns_endpgm")
        a(f"{ok}:")

    hdr = open("cdna_kernels/" + NAME + ".s.ref").read().split("; Override launch")[0]
    head = hdr + f"; @launch grid=(256,1,1) block=(320,1,1) lds={LDS_BYTES}\n"
    head += f'.amdgcn_target "amdgcn-amd-amdhsa--gfx950"\n.text\n.globl {NAME}_kernel\n.p2align 8\n.type {NAME}_kernel,@function\n'
    a(f"{NAME}_kernel:")
    a("s_cmp_ge_u32 s2, 256\ns_cbranch_scc1 L_end")
    a("s_load_dwordx16 s[4:19], s[0:1], 0\ns_load_dwordx8 s[20:27], s[0:1], 64")
    if ts:
        a("s_memrealtime s[64:65]")
    a("v_lshrrev_b32 v2, 6, v0\nv_and_b32 v0, 63, v0\nv_readfirstlane_b32 s3, v2")
    a(f"v_mov_b32 v1, {L_FLAG}")
    a("s_cmp_lg_u32 s3, 0\ns_cbranch_scc1 L_cons")

    a("s_setprio 3")
    a("v_mov_b32 v4, 0\nv_mov_b32 v5, 32\nv_mov_b32 v6, 32\nv_mov_b32 v7, 32")
    a("ds_write_b32 v1, v4\nds_write_b128 v1, v[4:7] offset:16\nds_write_b32 v1, v4 offset:32")
    a("v_lshrrev_b32 v2, 5, v0\nv_and_b32 v3, 31, v0\nv_lshlrev_b32 v30, 9, v2")
    for j in range(8):
        a(f"v_or_b32 v28, {2*j}, v2\nv_xor_b32 v28, v28, v3\nv_lshl_or_b32 v{8+j}, v28, 4, v30")
    a("v_mov_b32 v24, 0\nv_mov_b32 v25, 0\nv_mov_b32 v26, 0\nv_mov_b32 v27, 0")
    a("s_lshl_b32 s49, s2, 19")
    a("s_mov_b32 s48, 0")
    a("s_waitcnt lgkmcnt(0)")
    srd(36, 6, 0x8000000)
    a("s_barrier")
    jpub = (N - 1) % 16
    cpub = (N - 1) // 16
    a("L_slot:")
    a("s_waitcnt lgkmcnt(0)")
    a("L_chk:")
    a("v_min3_u32 v28, v24, v25, v26\nv_min_u32 v28, v28, v27\nv_readfirstlane_b32 s50, v28")
    a(f"s_add_u32 s50, s50, {RING}\ns_cmp_gt_u32 s50, s48\ns_cbranch_scc0 L_full")
    a("L_go:")
    a(f"s_and_b32 s50, s48, {RING-1}\ns_lshl_b32 m0, s50, 14")
    a(f"s_sub_u32 s51, s48, {cpub}\nv_mov_b32 v29, s51")
    for j in range(16):
        a(f"s_waitcnt vmcnt({N-1})")
        a(f"buffer_load_dwordx4 v{8+(j&7)}, s[36:39], s49 offen offset:{(j&3)*1024} nt lds")
        if j == jpub:
            a("ds_write_b32 v1, v29")
        if j == 10:
            a("ds_read_b128 v[24:27], v1 offset:16")
        if (j & 3) == 3:
            a("s_add_u32 s49, s49, 4096")
            if j != 15:
                a("s_add_u32 m0, m0, 4096")
    a("s_add_u32 s48, s48, 1\ns_and_b32 s50, s48, 31\ns_cbranch_scc1 L_slot")
    a("s_cmp_eq_u32 s48, 64\ns_cbranch_scc1 L_ltail")
    TS(1)
    a("s_mov_b32 s36, s8\ns_and_b32 s37, s9, 0xffff\ns_lshl_b32 s49, s2, 19")
    for j in range(4):
        a(f"v_or_b32 v28, {2*j}, v2\nv_lshlrev_b32 v28, 1, v28\nv_xor_b32 v28, v28, v3\nv_lshl_or_b32 v{8+j}, v28, 4, v30\nv_mov_b32 v{12+j}, v{8+j}")
    a("s_branch L_slot")
    a("L_full:")
    a(f"s_mov_b32 s29, {spin_lds}")
    a("L_full2:")
    a("ds_read_b128 v[24:27], v1 offset:16\ns_waitcnt lgkmcnt(0)")
    a("v_min3_u32 v28, v24, v25, v26\nv_min_u32 v28, v28, v27\nv_readfirstlane_b32 s50, v28")
    a(f"s_add_u32 s50, s50, {RING}\ns_cmp_gt_u32 s50, s48\ns_cbranch_scc1 L_go")
    a("s_sub_u32 s29, s29, 1\ns_cbranch_scc0 L_full2\ns_endpgm")

    a("L_ltail:")
    TS(2)
    a("v_mov_b32 v20, 63\nv_mov_b32 v21, 64")
    a("s_cmp_ge_u32 s2, 224\ns_cbranch_scc1 L_lt_none")
    a(f"s_mov_b32 s29, {spin_lds}")
    a("s_waitcnt lgkmcnt(0)")
    a("L_lt_chk:")
    a("v_min3_u32 v28, v24, v25, v26\nv_min_u32 v28, v28, v27\nv_readfirstlane_b32 s50, v28")
    a("s_cmp_ge_u32 s50, 59\ns_cbranch_scc1 L_lt_go")
    a("ds_read_b128 v[24:27], v1 offset:16\ns_waitcnt lgkmcnt(0)")
    a("s_sub_u32 s29, s29, 1\ns_cbranch_scc0 L_lt_chk\ns_endpgm")
    a("L_lt_go:")
    a("s_cmp_ge_u32 s2, 112\ns_cbranch_scc1 L_lt_ffn")

    def wseq(items):
        assert cpub == 1
        for k, (vo, sr, pre, pol) in enumerate(items):
            if pre:
                a(pre)
            if k < N:
                a(f"s_waitcnt vmcnt({N-1})")
            if k == N - 1 - 16:
                a("ds_write_b32 v1, v20")
            if k == N - 1:
                a("ds_write_b32 v1, v21")
            a(f"buffer_load_dwordx4 v{vo}, s[{sr}:{sr+3}], s49 offen {pol} lds")
        a("s_waitcnt vmcnt(0)")

    srd(40, 12, 4096 * 896)
    a("v_lshrrev_b32 v8, 3, v0\nv_mul_u32_u24 v8, 896, v8\nv_lshrrev_b32 v9, 4, v0\nv_lshlrev_b32 v9, 1, v9\nv_and_b32 v10, 7, v0\nv_xor_b32 v9, v9, v10\nv_lshl_add_u32 v8, v9, 4, v8")
    a(f"s_and_b32 s50, s2, 15\ns_mul_i32 s49, s50, {256*896}\ns_lshr_b32 s50, s2, 4\ns_lshl_b32 s50, s50, 7\ns_add_u32 s49, s49, s50\ns_mov_b32 m0, 0")
    wseq([(8, 40, (f"s_add_u32 s49, s49, {8*896}\ns_add_u32 m0, m0, 1024" if k else ""), "nt") for k in range(32)])
    a("s_branch L_lt_done")
    a("L_lt_ffn:")
    srd(36, 16, 448 * 3584)
    srd(40, 18, 448 * 3584)
    srd(44, 20, 1792 * 896)
    a("s_sub_u32 s50, s2, 112\ns_and_b32 s51, s50, 7\ns_mul_i32 s51, s51, 14\ns_lshr_b32 s50, s50, 3\ns_add_u32 s52, s50, s51")
    a("v_lshrrev_b32 v8, 1, v0\nv_mul_u32_u24 v8, 3584, v8\nv_and_b32 v9, 1, v0\nv_lshl_add_u32 v8, v9, 4, v8\nv_lshlrev_b32 v9, 4, v0")
    a("s_lshl_b32 s49, s52, 5\ns_mov_b32 m0, 0")
    gpol = "nt" if "gnt" in opts else ""
    it = []
    for k in range(14):
        it.append((8, 36, (f"s_add_u32 s49, s49, {32*3584}\ns_sub_u32 m0, m0, {14336-1024}" if k else ""), gpol))
        it.append((8, 40, "s_add_u32 m0, m0, 14336", gpol))
    for k in range(14):
        it.append((9, 44, (f"s_add_u32 s49, s49, 1024\ns_add_u32 m0, m0, 1024" if k else f"s_mul_i32 s49, s52, {16*896}\ns_mov_b32 m0, {2*14336}"), "nt"))
    wseq(it)
    a("s_branch L_lt_done")
    a("L_lt_none:")
    a("s_waitcnt vmcnt(16)\nds_write_b32 v1, v20\ns_waitcnt vmcnt(0)\nds_write_b32 v1, v21")
    a("L_lt_done:")
    TS(3)
    a("s_waitcnt lgkmcnt(0)\ns_barrier")
    if ts:
        srd(32, 26, 0x20000000)
        a("s_getreg_b32 s94, hwreg(HW_REG_XCC_ID, 0, 4)\ns_mov_b32 s95, -1")
        TS_store([0, 1, 2, 3, 15])
    a("s_endpgm")

    a("L_cons:")
    a("s_waitcnt lgkmcnt(0)")
    a(f"s_load_dword s28, s[26:27], {WS_EPOCH}")
    srd(32, 26, 0x20000000 if ts else WS_END)
    a("s_barrier")
    a("v_and_b32 v2, 15, v0\nv_lshrrev_b32 v3, 4, v0")
    a("s_sub_u32 s30, s3, 1")
    a("s_cmp_eq_u32 s3, 2\ns_cbranch_scc1 L_qprod")
    a("s_waitcnt lgkmcnt(0)")
    a("s_mul_i32 s28, s28, 1664525\ns_add_u32 s28, s28, 1013904223")
    a("s_cmp_eq_u32 s3, 3\ns_cbranch_scc1 L_clear")
    a("s_cmp_eq_u32 s3, 4\ns_cbranch_scc1 L_clchk")

    a(f"s_lshr_b32 s48, s2, 3\ns_lshl_b32 s48, s48, 13\ns_add_u32 s48, s48, {WS_QX}\ns_add_u32 s49, s48, 4096")
    a("v_lshlrev_b32 v4, 4, v0")
    a("v_xor_b32 v5, v3, v2\nv_lshlrev_b32 v6, 9, v2")
    for tt in range(4):
        a(f"v_xor_b32 v7, {4*tt}, v5\nv_lshl_or_b32 v{8+tt}, v7, 4, v6")
    a(f"s_mov_b32 s29, {spin_g}")
    a("L_qpoll:")
    for k in range(8):
        a(f"buffer_load_dwordx4 v[{32+4*k}:{35+4*k}], v4, s[32:35], s{48+(k>>2)} offen offset:{(k&3)*1024} sc1")
    a("s_waitcnt vmcnt(0)")
    a("v_mov_b32 v7, 0")
    for k in range(8):
        a(f"v_xor_b32 v12, s28, v{33+4*k}\nv_xor_b32 v13, s28, v{35+4*k}\nv_or3_b32 v7, v7, v12, v13")
    a("v_cmp_ne_u32 vcc, 0, v7\ns_cbranch_vccz L_qok")
    a("s_sub_u32 s29, s29, 1\ns_cbranch_scc0 L_qpoll\ns_endpgm")
    a("L_qok:")
    for half in range(2):
        for e in (0, 2):
            r = [32 + 4 * (kq * 2 + half) + e for kq in range(4)]
            a(f"v_add_f32 v{r[0]}, v{r[0]}, v{r[1]}\nv_add_f32 v{r[2]}, v{r[2]}, v{r[3]}\nv_add_f32 v{r[0]}, v{r[0]}, v{r[2]}")
        a(f"v_cvt_pk_bf16_f32 v{12+half}, v{32+4*half}, v{34+4*half}")
    a(f"v_lshlrev_b32 v14, 2, v0\nv_lshlrev_b32 v15, 4, v3")
    a(f"v_add_u32 v14, {L_Q}, v14\nv_add_u32 v15, {L_Q}, v15")
    a("ds_write_b32 v14, v12\nds_write_b32 v14, v13 offset:256")
    for t in range(8):
        a(f"ds_read_b128 v[{32+4*t}:{35+4*t}], v15 offset:{t*64}")
    TS(4)
    a("s_mov_b32 s48, 0\ns_mov_b32 s31, 0")
    a("s_mov_b32 s52, 0x00010001\ns_mov_b32 s53, 0x00010001")
    a("L_k:")
    lds_wait_gt(0, "s48", 31, 7)
    a(f"s_and_b32 s50, s48, {RING-1}\ns_lshl_b32 s50, s50, 14")
    for tt in range(4):
        a(f"v_add_u32 v{12+tt}, s50, v{8+tt}")
    for t in range(8):
        for tau in range(2):
            d = 64 + 8 * t + 4 * tau
            a(f"ds_read_b128 v[{d}:{d+3}], v{12+(t&3)} offset:{(t>>2)*256+tau*8192}")
    a("s_add_u32 s48, s48, 1\nv_mov_b32 v7, s48")
    for t in range(8):
        if t in (0, 2, 4, 6):
            a(f"s_waitcnt lgkmcnt({12-2*t})")
        if t == 6:
            a("ds_write_b32 v1, v7 offset:16")
        for tau in range(2):
            d = 64 + 8 * t + 4 * tau
            D = 128 + 4 * tau
            c = "0" if t == 0 else f"v[{D}:{D+3}]"
            a(f"v_mfma_f32_16x16x32_bf16 v[{D}:{D+3}], v[{d}:{d+3}], v[{32+4*t}:{35+4*t}], {c}")
    for r in range(8):
        a(f"v_cndmask_b32 v{16+r}, v{16+r}, v{128+r}, s[52:53]")
    a("s_lshl_b64 s[52:53], s[52:53], 1")
    a("s_and_b32 s50, s48, 15\ns_cbranch_scc1 L_k")
    a("s_cmp_eq_u32 s48, 32\ns_cbranch_scc1 L_kdone")
    for r in range(8):
        a(f"v_mov_b32 v{24+r}, v{16+r}")
    a("s_mov_b32 s52, 0x00010001\ns_mov_b32 s53, 0x00010001\ns_branch L_k")
    a("L_kdone:")
    TS(5)
    for r in range(16, 32, 2):
        rnd2(r, r + 1, 7)
    a("v_max3_f32 v12, v16, v17, v18")
    for r in range(19, 31, 2):
        a(f"v_max3_f32 v12, v12, v{r}, v{r+1}")
    a("v_max_f32 v12, v12, v31")
    allreduce16("v_max_f32", [12])
    xrow("v_max_f32", [12], [13], 16)
    xrow("v_max_f32", [12], [13], 32)
    a(f"s_mov_b32 s54, {hx(f2u(math.log2(math.e)/16))}")
    for r in range(16):
        a(f"v_sub_f32 v{64+r}, v{16+r}, v12\nv_mul_f32 v{64+r}, s54, v{64+r}")
    for r in range(16):
        a(f"v_exp_f32 v{64+r}, v{64+r}")
    for st in (8, 4, 2, 1):
        for r in range(st):
            a(f"v_add_f32 v{64+r}, v{64+r}, v{64+r+st}")
    a("v_mov_b32 v14, v64")
    allreduce16("v_add_f32", [14])
    xrow("v_add_f32", [14], [13], 16)
    xrow("v_add_f32", [14], [13], 32)
    a("v_mov_b32 v13, s28\nv_mov_b32 v15, s28")
    a(f"s_lshl_b32 s50, s2, 4\ns_add_u32 s50, s50, {WS_ML}\nv_mov_b32 v7, 0")
    a("s_mov_b64 exec, 1\nbuffer_store_dwordx4 v[12:15], v7, s[32:35], s50 offen sc1\ns_mov_b64 exec, -1")
    a(f"s_and_b32 s50, s50, {hx(~127)}\nv_and_b32 v7, 7, v0\nv_lshlrev_b32 v7, 4, v7")
    a(f"s_mov_b32 s29, {spin_g}")
    a("L_mlpoll:")
    a("buffer_load_dwordx4 v[64:67], v7, s[32:35], s50 offen sc1\ns_waitcnt vmcnt(0)")
    a("v_xor_b32 v68, s28, v65\nv_xor_b32 v69, s28, v67\nv_or_b32 v68, v68, v69\nv_cmp_ne_u32 vcc, 0, v68\ns_cbranch_vccz L_mlok")
    a("s_sub_u32 s29, s29, 1\ns_cbranch_scc0 L_mlpoll\ns_endpgm")
    a("L_mlok:")
    a("v_mov_b32 v12, v64")
    for m in ("quad_perm:[1,0,3,2]", "quad_perm:[2,3,0,1]", "row_half_mirror"):
        a(f"v_max_f32_dpp v12, v12, v12 {m} row_mask:0xf bank_mask:0xf")
    a("v_sub_f32 v64, v64, v12\nv_mul_f32 v64, s54, v64\nv_exp_f32 v64, v64\nv_mul_f32 v14, v64, v66")
    for m in ("quad_perm:[1,0,3,2]", "quad_perm:[2,3,0,1]", "row_half_mirror"):
        a(f"v_add_f32_dpp v14, v14, v14 {m} row_mask:0xf bank_mask:0xf")
    a("v_rcp_f32 v13, v14")
    a("v_fma_f32 v15, -v14, v13, 1.0\nv_fma_f32 v13, v15, v13, v13")
    for r in range(16):
        a(f"v_sub_f32 v{64+r}, v{16+r}, v12\nv_mul_f32 v{64+r}, s54, v{64+r}")
    for r in range(16):
        a(f"v_exp_f32 v{64+r}, v{64+r}")
    for r in range(16):
        a(f"v_mul_f32 v{64+r}, v{64+r}, v13")
    for r in range(8):
        a(f"v_cvt_pk_bf16_f32 v{80+r}, v{64+2*r}, v{65+2*r}")
    a(f"v_lshlrev_b32 v7, 6, v2\nv_lshl_add_u32 v7, v3, 4, v7\nv_add_u32 v7, {L_P}, v7\nv_mov_b32 v12, 1")
    a("ds_write_b128 v7, v[84:87]\nds_write_b128 v7, v[80:83] offset:1024\nds_write_b32 v1, v12 offset:32")
    TS(6)
    a("s_branch L_vphase")

    a("L_qprod:")
    srd(36, 10, 448 * 8192)
    srd(40, 4, 1792)
    a(f"v_lshlrev_b32 v4, 4, v0\nv_mov_b32 v5, {OOB}\nv_cmp_gt_u32 s[56:57], 56, v0\nv_cndmask_b32 v4, v5, v4, s[56:57]")
    a("buffer_load_dwordx4 v[8:11], v4, s[40:43], 0 offen\nbuffer_load_dwordx4 v[12:15], v4, s[40:43], 0 offen offset:896")
    a("v_lshrrev_b32 v5, 3, v0\nv_lshlrev_b32 v5, 13, v5\nv_lshlrev_b32 v6, 1, v3\nv_and_b32 v7, 7, v0\nv_xor_b32 v6, v6, v7\nv_lshl_add_u32 v5, v6, 4, v5")
    a(f"s_and_b32 s50, s2, 3\ns_mul_i32 s49, s50, {112*8192}\ns_lshr_b32 s51, s2, 2\ns_lshl_b32 s52, s51, 7\ns_add_u32 s49, s49, s52\ns_mov_b32 m0, {L_WQ}")
    for m in range(14):
        if m:
            a("s_add_u32 s49, s49, 65536\ns_add_u32 m0, m0, 1024")
        a("buffer_load_dwordx4 v5, s[36:39], s49 offen nt lds")
    a("s_waitcnt vmcnt(14)")
    for k in range(8):
        a(f"v_lshlrev_b32 v{16+2*k}, 16, v{8+k}\nv_and_b32 v{17+2*k}, 0xffff0000, v{8+k}")
    for b in range(2):
        o = 16 + 8 * b
        a(f"v_add_f32 v{32+b}, v{o}, v{o+1}")
        for k in range(2, 8):
            a(f"v_add_f32 v{32+b}, v{32+b}, v{o+k}")
    allreduce16("v_add_f32", [32, 33])
    xrow("v_add_f32", [32, 33], [34, 35], 16)
    xrow("v_add_f32", [32, 33], [34, 35], 32)
    a(f"s_mov_b32 s54, {hx(f2u(1/448))}")
    a("v_mul_f32 v32, s54, v32\nv_mul_f32 v33, s54, v33")
    for b in range(2):
        o = 16 + 8 * b
        a(f"v_mov_b32 v{36+b}, 0")
        for k in range(8):
            a(f"v_sub_f32 v38, v{o+k}, v{32+b}\nv_fmac_f32 v{36+b}, v38, v38")
        a(f"v_cndmask_b32 v{36+b}, 0, v{36+b}, s[56:57]")
    allreduce16("v_add_f32", [36, 37])
    xrow("v_add_f32", [36, 37], [34, 35], 16)
    xrow("v_add_f32", [36, 37], [34, 35], 32)
    a("v_mul_f32 v36, s54, v36\nv_mul_f32 v37, s54, v37")
    rnd2(32, 33, 34)
    rnd2(36, 37, 34)
    a(f"v_add_f32 v36, {hx(f2u(1e-5))}, v36\nv_add_f32 v37, {hx(f2u(1e-5))}, v37")
    rnd2(36, 37, 34)
    a("v_sqrt_f32 v36, v36\nv_sqrt_f32 v37, v37")
    rnd2(36, 37, 34)
    a("v_rcp_f32 v36, v36\nv_rcp_f32 v37, v37")
    for b in range(2):
        o = 16 + 8 * b
        for k in range(8):
            a(f"v_sub_f32 v{o+k}, v{o+k}, v{32+b}")
        for k in range(0, 8, 2):
            rnd2(o + k, o + k + 1, 34)
            a(f"v_mul_f32 v{o+k}, v{o+k}, v{36+b}\nv_mul_f32 v{o+k+1}, v{o+k+1}, v{36+b}")
            a(f"v_cvt_pk_bf16_f32 v{8+4*b+k//2}, v{o+k}, v{o+k+1}")
    a(f"v_lshlrev_b32 v4, 4, v0\nv_add_u32 v4, {L_LN1}, v4")
    a("s_mov_b64 exec, s[56:57]\nds_write_b128 v4, v[8:11]\nds_write_b128 v4, v[12:15] offset:896\ns_mov_b64 exec, -1")
    a(f"v_and_b32 v4, 1, v0\nv_mul_u32_u24 v4, 896, v4\nv_lshl_add_u32 v4, v3, 3, v4\ns_mul_i32 s52, s50, 224\ns_add_u32 s52, s52, {L_LN1}\nv_add_u32 v4, s52, v4")
    for m in range(7):
        a(f"ds_read_b64 v[{16+2*m}:{17+2*m}], v4 offset:{m*32}")
    a("v_lshrrev_b32 v5, 2, v0\nv_lshlrev_b32 v5, 7, v5\nv_and_b32 v6, 3, v0\nv_lshl_add_u32 v5, v6, 3, v5")
    a(f"v_add_u32 v5, {L_WQ}, v5\nv_bfe_u32 v6, v0, 3, 2")
    for ct in range(4):
        a(f"v_xor_b32 v7, {ct}, v6\nv_lshl_add_u32 v{40+ct}, v7, 5, v5")
    a("s_waitcnt vmcnt(0)")
    for ct in range(4):
        for m in range(7):
            d = 64 + 2 * (ct * 7 + m)
            a(f"ds_read_b64_tr_b16 v[{d}:{d+1}], v{40+ct} offset:{m*2048}")
    a("s_waitcnt lgkmcnt(0)")
    a("s_mul_i32 s28, s28, 1664525\ns_add_u32 s28, s28, 1013904223")
    for m in range(7):
        for ct in range(4):
            d = 64 + 2 * (ct * 7 + m)
            D = 48 + 4 * ct
            c = "0" if m == 0 else f"v[{D}:{D+3}]"
            a(f"v_mfma_f32_16x16x16_bf16 v[{D}:{D+3}], v[{d}:{d+1}], v[{16+2*m}:{17+2*m}], {c}")
    a("v_and_b32 v4, 1, v2\nv_lshlrev_b32 v4, 17, v4\nv_lshrrev_b32 v5, 2, v2\nv_lshl_add_u32 v4, v5, 7, v4\nv_lshl_add_u32 v4, v3, 5, v4\nv_bfe_u32 v6, v2, 1, 1\nv_lshl_add_u32 v4, v6, 4, v4")
    a(f"s_lshr_b32 s52, s2, 4\ns_lshl_b32 s52, s52, 13\ns_lshl_b32 s53, s50, 11\ns_add_u32 s52, s52, s53\ns_and_b32 s53, s51, 3\ns_lshl_b32 s53, s53, 9\ns_add_u32 s52, s52, s53\ns_add_u32 s52, s52, {WS_QX}")
    a("v_cmp_eq_u32 s[58:59], 1, v6\nv_cmp_eq_u32 s[60:61], 1, v5\nv_cmp_eq_u32 s[62:63], 2, v5\nv_cmp_eq_u32 vcc, 3, v5")
    for r in range(4):
        a(f"v_cndmask_b32 v{48+r}, v{48+r}, v{52+r}, s[60:61]\nv_cndmask_b32 v{48+r}, v{48+r}, v{56+r}, s[62:63]\nv_cndmask_b32 v{48+r}, v{48+r}, v{60+r}, vcc")
    a("v_cndmask_b32 v8, v48, v50, s[58:59]\nv_cndmask_b32 v10, v49, v51, s[58:59]\nv_mov_b32 v9, s28\nv_mov_b32 v11, s28")
    a("buffer_store_dwordx4 v[8:11], v4, s[32:35], s52 offen sc1")
    TS(7)
    a("s_branch L_vwait")

    a("L_clear:")
    for r in range(4):
        a(f"v_mov_b32 v{8+r}, {hx(SENT)}")
    a(f"v_lshlrev_b32 v4, 4, v0\ns_lshl_b32 s48, s2, 10\ns_add_u32 s48, s48, {WS_H1}")
    a("buffer_store_dwordx4 v[8:11], v4, s[32:35], s48 offen sc1")
    a("s_cmp_ge_u32 s2, 224\ns_cbranch_scc1 L_cl_done")
    a("s_cmp_ge_u32 s2, 112\ns_cbranch_scc1 L_cl_ffn")
    a("v_and_b32 v5, 1, v3\nv_mul_u32_u24 v5, 1792, v5\nv_lshl_add_u32 v5, v2, 4, v5")
    a(f"s_and_b32 s48, s2, 15\ns_mul_i32 s48, s48, 3584\ns_lshr_b32 s49, s2, 4\ns_lshl_b32 s49, s49, 8\ns_add_u32 s48, s48, s49\ns_add_u32 s48, s48, {WS_H2}")
    a("s_mov_b32 exec_hi, 0\nbuffer_store_dwordx4 v[8:11], v5, s[32:35], s48 offen sc1\ns_mov_b64 exec, -1")
    a("s_branch L_cl_done")
    a("L_cl_ffn:")
    a("s_sub_u32 s50, s2, 112\ns_and_b32 s51, s50, 7\ns_mul_i32 s51, s51, 14\ns_lshr_b32 s50, s50, 3\ns_add_u32 s52, s50, s51")
    a(f"v_mul_u32_u24 v5, {112*64}, v2\nv_lshl_add_u32 v5, v3, 4, v5\ns_lshl_b32 s48, s52, 6\ns_add_u32 s48, s48, {WS_H3}")
    a("s_mov_b32 s50, 0x3fff3fff\ns_mov_b32 s51, 0x3fff3fff\ns_mov_b64 exec, s[50:51]")
    for c in range(4):
        if c:
            a(f"s_add_u32 s48, s48, {14*112*64}")
        a("buffer_store_dwordx4 v[8:11], v5, s[32:35], s48 offen sc1")
    a("s_mov_b64 exec, -1")
    a("L_cl_done:")
    a(f"s_waitcnt vmcnt(0)\nv_mov_b32 v8, s28\nv_mov_b32 v4, 0\ns_lshl_b32 s48, s2, 2\ns_add_u32 s48, s48, {WS_CL}")
    a("s_mov_b64 exec, 1\nbuffer_store_dword v8, v4, s[32:35], s48 offen sc1\ns_mov_b64 exec, -1")
    a("s_branch L_vwait")

    a("L_clchk:")
    a("s_mov_b32 s31, 0")
    lds_wait_gt(0, "16", 31, 7)
    a(f"v_lshlrev_b32 v4, 4, v0\ns_mov_b32 s48, {WS_CL}\ns_mov_b32 s29, {spin_g}")
    a("L_clpoll:")
    a("buffer_load_dwordx4 v[8:11], v4, s[32:35], s48 offen sc1\ns_waitcnt vmcnt(0)")
    a("v_xor_b32 v8, s28, v8\nv_xor_b32 v9, s28, v9\nv_xor_b32 v10, s28, v10\nv_xor_b32 v11, s28, v11\nv_or3_b32 v8, v8, v9, v10\nv_or_b32 v8, v8, v11")
    a("v_cmp_ne_u32 vcc, 0, v8\ns_cbranch_vccz L_vwait")
    a("s_sub_u32 s29, s29, 1\ns_cbranch_scc0 L_clpoll\ns_endpgm")

    a("L_vwait:")
    a("s_mov_b32 s31, 0")
    lds_wait_gt(32, "0", 31, 7)
    a("s_mov_b32 s31, 0")
    a("L_vphase:")
    a("v_lshrrev_b32 v4, 2, v0\nv_and_b32 v5, 7, v4\nv_lshlrev_b32 v4, 9, v4\nv_and_b32 v6, 3, v0\nv_lshl_add_u32 v4, v6, 3, v4")
    a("s_lshl_b32 s50, s30, 2\nv_xor_b32 v5, s50, v5")
    for j in range(4):
        a(f"v_xor_b32 v6, {j}, v5\nv_lshl_add_u32 v{8+j}, v6, 5, v4")
    a(f"v_lshlrev_b32 v16, 4, v3\nv_add_u32 v16, {L_P}, v16")
    a("s_lshl_b32 s50, s30, 2\nv_add_u32 v17, s50, v1")
    for r in range(16):
        a(f"v_mov_b32 v{48+r}, 0")
    a("s_mov_b32 s48, 32")
    a("L_v:")
    a("ds_read_b128 v[20:23], v16\nv_add_u32 v16, 64, v16")
    a(f"s_and_b32 s50, s48, {RING-1}\ns_lshl_b32 s50, s50, 14")
    for j in range(4):
        a(f"v_add_u32 v{12+j}, s50, v{8+j}")
    lds_wait_gt(0, "s48", 31, 7)
    for j in range(4):
        for hh in range(2):
            d = 32 + 4 * j + 2 * hh
            a(f"ds_read_b64_tr_b16 v[{d}:{d+1}], v{12+j} offset:{hh*8192}")
    a("s_add_u32 s48, s48, 1\nv_mov_b32 v7, s48")
    for j in range(4):
        a(f"s_waitcnt lgkmcnt({6-2*j})")
        if j == 3:
            a("ds_write_b32 v17, v7 offset:16")
        a(f"v_mfma_f32_16x16x32_bf16 v[{48+4*j}:{51+4*j}], v[{32+4*j}:{35+4*j}], v[20:23], v[{48+4*j}:{51+4*j}]")
    a("s_cmp_lt_u32 s48, 64\ns_cbranch_scc1 L_v")
    a(f"v_lshlrev_b32 v4, 4, v3\ns_lshl_b32 s48, s2, 10\ns_lshl_b32 s50, s30, 8\ns_add_u32 s48, s48, s50\ns_add_u32 s48, s48, {WS_H1}")
    a("s_mov_b32 s50, 0x00010001\ns_mov_b32 s51, 0x00010001\ns_mov_b64 exec, s[50:51]")
    for j in range(4):
        a(f"buffer_store_dwordx4 v[{48+4*j}:{51+4*j}], v4, s[32:35], s48 offen offset:{j*64} sc1")
    a("s_mov_b64 exec, -1")
    TS(8)
    a("s_cmp_ge_u32 s2, 224\ns_cbranch_scc1 L_final")
    a("s_cmp_ge_u32 s2, 112\ns_cbranch_scc1 L_ffn")

    def poll_sum(name, loads, nacc_code):
        a(f"s_mov_b32 s29, {spin_g}")
        a(f"L_{name}:")
        for l in loads:
            a(l)
        nacc_code()
        a(f"v_cmp_u_f32 vcc, v7, v7\ns_cbranch_vccz L_{name}ok")
        a(f"s_sub_u32 s29, s29, 1\ns_cbranch_scc0 L_{name}")
        a(f"L_{name}ok:")

    def sum_pieces(base, n, acc):
        def code():
            for k in range(1, n):
                a(f"s_waitcnt vmcnt({n-1-k})")
                for r in range(4):
                    s0 = base + r if k == 1 else acc + r
                    a(f"v_add_f32 v{acc+r}, v{s0}, v{base+4*k+r}")
            if n == 1:
                a("s_waitcnt vmcnt(0)")
                for r in range(4):
                    a(f"v_mov_b32 v{acc+r}, v{base+r}")
            a(f"v_add_f32 v7, v{acc}, v{acc+1}\nv_add_f32 v6, v{acc+2}, v{acc+3}\nv_add_f32 v7, v7, v6")
        return code

    a("v_lshrrev_b32 v5, 2, v0\nv_lshlrev_b32 v5, 7, v5\nv_and_b32 v6, 3, v0\nv_lshl_add_u32 v5, v6, 3, v5")
    a("v_bfe_u32 v6, v0, 3, 2\nv_xor_b32 v6, s30, v6\nv_lshl_add_u32 v5, v6, 5, v5")
    a("v_lshrrev_b32 v8, 5, v0\nv_lshlrev_b32 v8, 12, v8\nv_and_b32 v9, 31, v0\nv_lshl_add_u32 v8, v9, 4, v8")
    a(f"s_lshr_b32 s50, s30, 1\ns_lshl_b32 s48, s50, 4\ns_and_b32 s51, s2, 15\ns_add_u32 s48, s48, s51\ns_lshl_b32 s48, s48, 13\ns_and_b32 s52, s30, 1\ns_lshl_b32 s53, s52, 9\ns_add_u32 s48, s48, s53\ns_add_u32 s48, s48, {WS_H1}")
    a("v_lshrrev_b32 v10, 3, v9\nv_lshlrev_b32 v10, 6, v10\nv_and_b32 v11, 3, v9\nv_lshl_add_u32 v10, v11, 4, v10\nv_bfe_u32 v11, v9, 2, 1\nv_lshl_add_u32 v10, v11, 3, v10")
    a(f"s_lshl_b32 s53, s30, 8\ns_add_u32 s53, s53, {L_O}\nv_add_u32 v10, s53, v10")
    a(f"v_and_b32 v11, 1, v0\nv_lshlrev_b32 v12, 9, v11\nv_lshl_add_u32 v12, v3, 4, v12\nv_add_u32 v12, {L_O}, v12")
    a("v_mul_u32_u24 v13, 1792, v11\nv_lshl_add_u32 v13, v3, 4, v13")
    a(f"s_mul_i32 s49, s51, 3584\ns_lshr_b32 s53, s2, 4\ns_lshl_b32 s53, s53, 8\ns_add_u32 s49, s49, s53\ns_lshl_b32 s53, s30, 6\ns_add_u32 s49, s49, s53\ns_add_u32 s49, s49, {WS_H2}")
    a("s_barrier")
    for t in range(8):
        for hh in range(2):
            d = 64 + 4 * t + 2 * hh
            a(f"ds_read_b64_tr_b16 v[{d}:{d+1}], v5 offset:{t*4096+hh*2048}")
    TS(9)
    poll_sum("h1", [f"buffer_load_dwordx4 v[{32+4*k}:{35+4*k}], v8, s[32:35], s48 offen offset:{k*1024} sc1" for k in range(4)], sum_pieces(32, 4, 16))
    TS(10)
    xrow("v_add_f32", [16, 17, 18, 19], [20, 21, 22, 23], 32)
    a("v_cvt_pk_bf16_f32 v20, v16, v17\nv_cvt_pk_bf16_f32 v21, v18, v19")
    a("ds_write_b64 v10, v[20:21]\ns_waitcnt lgkmcnt(0)\ns_barrier")
    for t in range(8):
        a(f"ds_read_b128 v[{96+4*t}:{99+4*t}], v12 offset:{t*64}")
    for t in range(8):
        a(f"s_waitcnt lgkmcnt({7-t})")
        c = "0" if t == 0 else "v[24:27]"
        a(f"v_mfma_f32_16x16x32_bf16 v[24:27], v[{64+4*t}:{67+4*t}], v[{96+4*t}:{99+4*t}], {c}")
    a("s_mov_b32 s50, 0x00030003\ns_mov_b32 s51, 0x00030003\ns_mov_b64 exec, s[50:51]")
    a("buffer_store_dwordx4 v[24:27], v13, s[32:35], s49 offen sc1")
    a("s_mov_b64 exec, -1")
    TS(11)
    a("s_branch L_fin")

    a("L_ffn:")
    srd(40, 4, 1792)
    a("s_sub_u32 s50, s2, 112\ns_and_b32 s51, s50, 7\ns_mul_i32 s51, s51, 14\ns_lshr_b32 s50, s50, 3\ns_add_u32 s52, s50, s51")
    a("v_lshrrev_b32 v8, 5, v0\nv_and_b32 v9, 31, v0\nv_cmp_gt_u32 vcc, 28, v9")
    a(f"v_mul_u32_u24 v10, 896, v8\nv_lshl_add_u32 v10, v9, 3, v10\ns_mul_i32 s50, s30, 224\nv_add_u32 v10, s50, v10\nv_mov_b32 v11, {OOB}")
    a("v_lshlrev_b32 v12, 1, v10\nv_cndmask_b32 v10, v11, v10, vcc\nv_cndmask_b32 v12, v11, v12, vcc")
    a("buffer_load_dwordx2 v[14:15], v10, s[40:43], 0 offen")
    a(f"v_lshlrev_b32 v24, 5, v8\nv_add_u32 v24, {L_ST}, v24\ns_lshl_b32 s50, s30, 3\nv_add_u32 v25, s50, v24")
    a(f"s_lshl_b32 s50, s30, 9\ns_add_u32 s50, s50, {L_LN2}\nv_lshl_add_u32 v26, v0, 3, s50")
    a("v_and_b32 v11, 1, v0\nv_lshlrev_b32 v27, 8, v11\nv_lshl_add_u32 v27, v3, 3, v27\nv_add_u32 v27, s50, v27")
    a(f"v_lshlrev_b32 v28, 6, v11\nv_lshl_add_u32 v28, v3, 4, v28\nv_add_u32 v28, {L_RED}, v28\ns_lshl_b32 s50, s30, 8\nv_add_u32 v29, s50, v28")
    a(f"v_mul_u32_u24 v30, {112*64}, v2\nv_lshl_add_u32 v30, v3, 4, v30\ns_lshl_b32 s49, s52, 6\ns_mul_i32 s50, s30, {14*112*64}\ns_add_u32 s49, s49, s50\ns_add_u32 s49, s49, {WS_H3}")
    a(f"s_mul_i32 s50, s30, 3584\nv_lshl_add_u32 v4, v0, 3, s50")
    a(f"v_lshrrev_b32 v5, 2, v0\nv_mul_u32_u24 v5, 896, v5\nv_and_b32 v6, 3, v0\nv_lshl_add_u32 v5, v6, 3, v5\ns_mul_i32 s50, s30, 224\nv_add_u32 v5, s50, v5")
    a("s_waitcnt vmcnt(0)\ns_barrier")
    for m in range(7):
        a(f"ds_read_b64_tr_b16 v[{128+2*m}:{129+2*m}], v4 offset:{m*512}")
        a(f"ds_read_b64_tr_b16 v[{144+2*m}:{145+2*m}], v4 offset:{14336+m*512}")
        a(f"ds_read_b64_tr_b16 v[{160+2*m}:{161+2*m}], v5 offset:{28672+m*32}")
    a("v_lshlrev_b32 v20, 16, v14\nv_and_b32 v21, 0xffff0000, v14\nv_lshlrev_b32 v22, 16, v15\nv_and_b32 v23, 0xffff0000, v15")
    a("s_waitcnt lgkmcnt(0)")
    TS(9)
    loads = []
    for h in range(16):
        loads.append(f"s_mov_b32 s50, {WS_H2 + h*3584}\nbuffer_load_dwordx4 v[{64+4*h}:{67+4*h}], v12, s[32:35], s50 offen sc1")
    poll_sum("h2", loads, sum_pieces(64, 16, 16))
    TS(12)
    rnd2(16, 17, 6)
    rnd2(18, 19, 7)
    for r in range(4):
        a(f"v_add_f32 v{16+r}, v{16+r}, v{20+r}")
    rnd2(16, 17, 6)
    rnd2(18, 19, 7)
    a("v_add_f32 v32, v16, v17\nv_mul_f32 v33, v16, v16\nv_add_f32 v34, v18, v19\nv_fmac_f32 v33, v17, v17\nv_add_f32 v32, v32, v34\nv_fmac_f32 v33, v18, v18\nv_fmac_f32 v33, v19, v19")
    allreduce16("v_add_f32", [32, 33])
    xrow("v_add_f32", [32, 33], [34, 35], 16)
    a("s_mov_b32 s50, 1\ns_mov_b32 s51, 1\ns_mov_b64 exec, s[50:51]\nds_write_b64 v25, v[32:33]\ns_mov_b64 exec, -1")
    a("s_waitcnt lgkmcnt(0)\ns_barrier")
    a("ds_read_b128 v[36:39], v24\nds_read_b128 v[40:43], v24 offset:16")
    a(f"s_mov_b32 s54, {hx(f2u(1/448))}")
    a("s_waitcnt lgkmcnt(0)")
    a("v_add_f32 v36, v36, v38\nv_add_f32 v37, v37, v39\nv_add_f32 v40, v40, v42\nv_add_f32 v41, v41, v43\nv_add_f32 v36, v36, v40\nv_add_f32 v37, v37, v41")
    a("v_mul_f32 v36, s54, v36\nv_mul_f32 v37, s54, v37\nv_fma_f32 v37, -v36, v36, v37\nv_max_f32 v37, 0, v37")
    rnd2(36, 37, 6)
    a(f"v_add_f32 v37, {hx(f2u(1e-5))}, v37")
    for r in range(4):
        a(f"v_sub_f32 v{16+r}, v{16+r}, v36")
    rnd1(37)
    a("v_sqrt_f32 v37, v37")
    rnd2(16, 17, 6)
    rnd1(37)
    a("v_rcp_f32 v37, v37")
    rnd2(18, 19, 7)
    for r in range(4):
        a(f"v_mul_f32 v{16+r}, v{16+r}, v37")
    a("v_cvt_pk_bf16_f32 v20, v16, v17\nv_cvt_pk_bf16_f32 v21, v18, v19")
    a("ds_write_b64 v26, v[20:21]")
    for m in range(7):
        a(f"ds_read_b64 v[{64+2*m}:{65+2*m}], v27 offset:{m*32}")
    for m in range(7):
        a(f"s_waitcnt lgkmcnt({6-m})")
        for (D, W) in ((32, 128), (36, 144)):
            c = "0" if m == 0 else f"v[{D}:{D+3}]"
            a(f"v_mfma_f32_16x16x16_bf16 v[{D}:{D+3}], v[{W+2*m}:{W+1+2*m}], v[{64+2*m}:{65+2*m}], {c}")
    a("s_mov_b32 s50, 0x00030003\ns_mov_b32 s51, 0x00030003\ns_mov_b64 exec, s[50:51]")
    a("ds_write_b128 v29, v[32:35]\nds_write_b128 v29, v[36:39] offset:128\ns_mov_b64 exec, -1")
    a("s_waitcnt lgkmcnt(0)\ns_barrier")
    for c in range(4):
        a(f"ds_read_b128 v[{64+4*c}:{67+4*c}], v28 offset:{c*256}")
    for c in range(4):
        a(f"ds_read_b128 v[{80+4*c}:{83+4*c}], v28 offset:{c*256+128}")
    k0 = -2 * math.sqrt(2 / math.pi) * math.log2(math.e)
    a(f"s_mov_b32 s54, {hx(f2u(k0))}\ns_mov_b32 s55, {hx(f2u(k0*0.044715))}\nv_mov_b32 v6, s54")
    a("s_waitcnt lgkmcnt(4)")
    for r in range(4):
        a(f"v_add_f32 v{64+r}, v{64+r}, v{68+r}\nv_add_f32 v{72+r}, v{72+r}, v{76+r}")
    for r in range(4):
        a(f"v_add_f32 v{64+r}, v{64+r}, v{72+r}")
    rnd2(64, 65, 7)
    rnd2(66, 67, 7)
    for r in range(4):
        a(f"v_mul_f32 v{68+r}, v{64+r}, v{64+r}")
    for r in range(4):
        a(f"v_fma_f32 v{68+r}, v{68+r}, s55, v6")
    for r in range(4):
        a(f"v_mul_f32 v{68+r}, v{68+r}, v{64+r}")
    for r in range(4):
        a(f"v_exp_f32 v{68+r}, v{68+r}")
    a("s_waitcnt lgkmcnt(0)")
    for r in range(4):
        a(f"v_add_f32 v{80+r}, v{80+r}, v{84+r}\nv_add_f32 v{88+r}, v{88+r}, v{92+r}")
    for r in range(4):
        a(f"v_add_f32 v{68+r}, 1.0, v{68+r}")
    for r in range(4):
        a(f"v_rcp_f32 v{68+r}, v{68+r}")
    for r in range(4):
        a(f"v_add_f32 v{80+r}, v{80+r}, v{88+r}")
    rnd2(80, 81, 7)
    rnd2(82, 83, 7)
    for r in range(4):
        a(f"v_mul_f32 v{64+r}, v{64+r}, v{68+r}")
    rnd2(64, 65, 7)
    rnd2(66, 67, 7)
    for r in range(4):
        a(f"v_mul_f32 v{64+r}, v{64+r}, v{80+r}")
    a("v_cvt_pk_bf16_f32 v20, v64, v65\nv_cvt_pk_bf16_f32 v21, v66, v67")
    a("s_mov_b32 s50, 0x00030003\ns_mov_b32 s51, 0x00030003")
    for j in range(7):
        a(f"v_cndmask_b32 v{96+2*j}, 0, v20, s[50:51]\nv_cndmask_b32 v{97+2*j}, 0, v21, s[50:51]")
        if j < 6:
            a("s_lshl_b64 s[50:51], s[50:51], 2")
    for j in range(7):
        c = "0" if j == 0 else "v[32:35]"
        a(f"v_mfma_f32_16x16x16_bf16 v[32:35], v[{160+2*j}:{161+2*j}], v[{96+2*j}:{97+2*j}], {c}")
    a("s_mov_b32 s50, 0x3fff3fff\ns_mov_b32 s51, 0x3fff3fff\ns_mov_b64 exec, s[50:51]")
    a("buffer_store_dwordx4 v[32:35], v30, s[32:35], s49 offen sc1")
    a("s_mov_b64 exec, -1")
    TS(13)
    a("s_branch L_fin")

    a("L_final:")
    a("s_barrier")
    a("s_cmp_ge_u32 s2, 252\ns_cbranch_scc1 L_fin")
    a("s_cmp_ge_u32 s30, 2\ns_cbranch_scc1 L_fin")
    srd(40, 4, 1792)
    srd(44, 22, 1792)
    a("s_sub_u32 s52, s2, 224")
    a("s_mul_i32 s53, s30, 896\ns_lshl_b32 s50, s52, 5\ns_add_u32 s53, s53, s50\nv_and_b32 v4, 3, v0\nv_lshlrev_b32 v10, 3, v4")
    a("buffer_load_dwordx2 v[14:15], v10, s[40:43], s53 offen")
    a(f"v_lshrrev_b32 v5, 2, v0\nv_mul_u32_u24 v8, 3584, v5\nv_lshl_add_u32 v8, v4, 4, v8\ns_lshl_b32 s48, s53, 1\ns_add_u32 s48, s48, {WS_H2}")
    a(f"v_lshlrev_b32 v9, 4, v0\ns_lshl_b32 s49, s52, 1\ns_add_u32 s49, s49, s30\ns_mul_i32 s49, s49, {112*64}\ns_add_u32 s49, s49, {WS_H3}\ns_add_u32 s55, s49, 4096")
    a("s_waitcnt vmcnt(0)")
    a("v_lshlrev_b32 v20, 16, v14\nv_and_b32 v21, 0xffff0000, v14\nv_lshlrev_b32 v22, 16, v15\nv_and_b32 v23, 0xffff0000, v15")

    def red16(acc):
        rs = [acc + r for r in range(4)]
        for m in ("row_ror:4", "row_ror:8"):
            for r in rs:
                a(f"v_add_f32_dpp v{r}, v{r}, v{r} {m} row_mask:0xf bank_mask:0xf")
        xrow("v_add_f32", rs, [24, 25, 26, 27], 16)
        xrow("v_add_f32", rs, [24, 25, 26, 27], 32)

    poll_sum("f2", ["buffer_load_dwordx4 v[32:35], v8, s[32:35], s48 offen sc1"], sum_pieces(32, 1, 16))
    red16(16)
    rnd2(16, 17, 6)
    rnd2(18, 19, 7)
    for r in range(4):
        a(f"v_add_f32 v{20+r}, v{16+r}, v{20+r}")
    rnd2(20, 21, 6)
    rnd2(22, 23, 7)
    TS(12)
    poll_sum("f3", [f"buffer_load_dwordx4 v[{32+4*k}:{35+4*k}], v9, s[32:35], s{49 if k < 4 else 55} offen offset:{(k&3)*1024} sc1" for k in range(7)], sum_pieces(32, 7, 16))
    TS(13)
    red16(16)
    rnd2(16, 17, 6)
    rnd2(18, 19, 7)
    for r in range(4):
        a(f"v_add_f32 v{16+r}, v{16+r}, v{20+r}")
    a("v_cvt_pk_bf16_f32 v20, v16, v17\nv_cvt_pk_bf16_f32 v21, v18, v19")
    a("s_mov_b64 exec, 15\nbuffer_store_dwordx2 v[20:21], v10, s[44:47], s53 offen")
    a("s_or_b32 s50, s52, s30\ns_cbranch_scc1 L_fin2")
    a(f"s_mov_b64 exec, 1\nv_mov_b32 v8, s28\nv_mov_b32 v4, {WS_EPOCH}\nbuffer_store_dword v8, v4, s[32:35], 0 offen sc1")
    a("L_fin2:")
    a("s_mov_b64 exec, -1")
    TS(14)
    a("L_fin:")
    if ts:
        a("s_cmp_eq_u32 s3, 1\ns_cbranch_scc0 L_ts2")
        TS_store([4, 5, 6, 8, 9, 10, 11, 12, 13, 14])
        a("s_endpgm")
        a("L_ts2:")
        a("s_cmp_eq_u32 s3, 2\ns_cbranch_scc0 L_end")
        TS_store([7])
    a("L_end:")
    a("s_endpgm")
    nv = 176
    tail = f""".section .rodata,"a"
.p2align 6
.amdhsa_kernel {NAME}_kernel
  .amdhsa_next_free_vgpr {nv}
  .amdhsa_next_free_sgpr 102
  .amdhsa_accum_offset {nv}
  .amdhsa_group_segment_fixed_size 0
  .amdhsa_kernarg_size 96
  .amdhsa_user_sgpr_count 2
  .amdhsa_user_sgpr_kernarg_segment_ptr 1
  .amdhsa_system_sgpr_workgroup_id_x 1
  .amdhsa_float_denorm_mode_32 3
.end_amdhsa_kernel
"""
    return head + A.text() + tail


if __name__ == "__main__":
    out = sys.argv[1]
    kw = {}
    opts = []
    for x in sys.argv[2:]:
        if x == "ts":
            kw["ts"] = True
        elif x.startswith("N="):
            kw["N"] = int(x[2:])
        else:
            opts.append(x)
    open(out, "w").write(gen(opts=tuple(opts), **kw))
```

```python
import re

TRANS = ("v_exp_", "v_log_", "v_rcp_", "v_rsq_", "v_sqrt_", "v_sin_", "v_cos_")


def regs_of(tok):
    tok = tok.strip()
    tok = tok.lstrip("-")
    m = re.fullmatch(r"abs\((.*)\)", tok) or re.fullmatch(r"\|(.*)\|", tok)
    if m:
        tok = m.group(1)
    m = re.fullmatch(r"([vsa])(\d+)", tok)
    if m:
        return {(m.group(1), int(m.group(2)))}
    m = re.fullmatch(r"([vsa])\[(\d+):(\d+)\]", tok)
    if m:
        return {(m.group(1), i) for i in range(int(m.group(2)), int(m.group(3)) + 1)}
    if tok in ("vcc", "vcc_lo", "vcc_hi"):
        return {("s", "vcc")}
    if tok in ("exec", "exec_lo", "exec_hi"):
        return {("s", "exec")}
    if tok == "m0":
        return {("s", "m0")}
    return set()


class Ins:
    def __init__(self, text):
        self.text = text
        t = text.split(";")[0].strip()
        self.label = None
        self.op = None
        if not t:
            return
        if t.endswith(":"):
            self.label = t[:-1]
            return
        if t.startswith("."):
            return
        parts = t.split(None, 1)
        self.op = parts[0]
        rest = parts[1] if len(parts) > 1 else ""
        ops = []
        cur = ""
        depth = 0
        for ch in rest:
            if ch in "[(":
                depth += 1
            if ch in "])":
                depth -= 1
            if ch == "," and depth == 0:
                ops.append(cur)
                cur = ""
            else:
                cur += ch
        if cur.strip():
            ops.append(cur)
        self.mods = ""
        if ops:
            last = ops[-1].strip().split(None, 1)
            ops[-1] = last[0]
            self.mods = last[1] if len(last) > 1 else ""
        self.ops = [o.strip() for o in ops]
        op = self.op
        self.mfma = op.startswith("v_mfma")
        self.valu = op.startswith("v_") and not self.mfma
        self.trans = op.startswith(TRANS)
        self.dpp = "_dpp" in op
        self.permlane = op.startswith("v_permlane")
        self.rdlane = op.startswith(("v_readlane", "v_readfirstlane"))
        self.wrlane = op.startswith("v_writelane")
        self.vmem = op.startswith(("buffer_", "global_"))
        self.ds = op.startswith("ds_")
        self.salu = op.startswith("s_") and not op.startswith(("s_waitcnt", "s_nop", "s_barrier", "s_branch", "s_cbranch", "s_load", "s_atomic", "s_mem", "s_endpgm", "s_setprio", "s_sleep"))
        self.ldsdma = self.vmem and (" lds" in " " + self.mods)
        R = [regs_of(o) for o in self.ops]
        allr = set().union(*R) if R else set()
        self.dst = set()
        self.src = set()
        self.srcC = set()
        self.stdata = set()
        if self.mfma:
            self.dst = R[0]
            self.src = R[1] | R[2]
            self.srcC = R[3]
            self.passes = 8 if "32x32" in op else 4
        elif self.permlane:
            self.dst = allr
            self.src = allr
        elif self.valu:
            self.dst = set(R[0])
            self.src = set().union(*R[1:]) if len(R) > 1 else set()
            if "_co_" in op or op.startswith("v_div_scale"):
                self.dst |= R[1]
                self.src = set().union(*R[2:])
            if op.startswith(("v_fmac", "v_dot2c", "v_writelane")) or self.dpp:
                self.src |= R[0]
            if op.startswith("v_cmpx"):
                self.dst |= {("s", "exec")}
        elif self.vmem:
            if op in ("buffer_inv", "buffer_wbl2"):
                pass
            elif "store" in op or "atomic" in op:
                self.src = allr
                di = 0 if op.startswith("buffer_") else 1
                if "x4" in op or "x3" in op:
                    self.stdata = R[di]
                if "atomic" in op and "sc0" in self.mods:
                    self.dst = R[0]
            elif self.ldsdma:
                self.src = allr | {("s", "m0")}
            else:
                self.dst = R[0]
                self.src = set().union(*R[1:])
        elif self.ds:
            if op.startswith(("ds_read", "ds_bpermute", "ds_permute", "ds_swizzle")) or "_rtn" in op:
                self.dst = R[0]
                self.src = set().union(*R[1:])
            else:
                self.src = allr
        elif self.salu:
            if op.startswith(("s_cmp", "s_bitcmp")):
                self.src = allr
            else:
                self.dst = R[0] if R else set()
                self.src = set().union(*R[1:]) if len(R) > 1 else set()
                if "saveexec" in op:
                    self.dst |= {("s", "exec")}

    def states(self):
        if self.op is None:
            return 0
        if self.op == "s_nop":
            return int(self.ops[0], 0) + 1
        return 1


def need(p, c):
    n = 0
    V = lambda s: {r for r in s if r[0] in "va"}
    S = lambda s: {r for r in s if r[0] == "s"}
    if p.valu:
        pv = V(p.dst)
        ps = S(p.dst)
        if pv:
            if c.dpp and pv & V(c.src):
                n = max(n, 2)
            if c.permlane and pv & V(c.src):
                n = max(n, 2)
            if c.rdlane and pv & V(c.src):
                n = max(n, 1)
            if c.mfma and pv & (c.src | c.srcC):
                n = max(n, 2)
            if p.trans and c.valu and not c.trans and pv & V(c.src):
                n = max(n, 1)
            if p.trans and c.valu and c.trans and pv & V(c.src):
                n = max(n, 1)
            if p.op.startswith("v_dot") and (c.valu or c.mfma) and pv & (V(c.src) | V(c.dst)):
                n = max(n, 3)
        if ps:
            if c.valu and ps & S(c.src):
                n = max(n, 4 if (c.rdlane or c.wrlane) else 2)
            if c.vmem and ps & S(c.src):
                n = max(n, 5)
            if ("s", "exec") in ps:
                if c.dpp:
                    n = max(n, 5)
                if c.mfma or c.rdlane or c.wrlane or c.permlane:
                    n = max(n, 4)
            if c.salu and ps & S(c.src):
                n = max(n, 1)
            if c.op.startswith(("s_cbranch_vcc",)) and ("s", "vcc") in ps:
                n = max(n, 1)
    if p.mfma:
        big = 8 if p.passes == 4 else 12
        if c.mfma:
            if p.dst & c.src:
                n = max(n, big)
            if p.dst & c.srcC and not (p.dst == c.srcC and p.passes == c.passes and p.op == c.op):
                n = max(n, big - 2)
            if p.dst & c.dst and not (p.dst & c.srcC):
                n = max(n, big)
        elif c.valu or c.vmem or c.ds:
            if p.dst & (c.src | c.dst):
                n = max(n, big)
            if c.valu and p.srcC & c.dst:
                n = max(n, 3 if p.passes == 4 else 7)
    if p.salu and ("s", "m0") in p.dst and c.ldsdma:
        n = max(n, 1)
    if p.stdata and (c.valu or c.mfma or c.ds or c.vmem) and p.stdata & c.dst:
        n = max(n, 2)
    return n


class Asm:
    def __init__(self):
        self.lines = []

    def __call__(self, text):
        for l in text.split("\n"):
            l = l.strip()
            if l:
                self.lines.append(l)

    def padded(self):
        out = []
        for l in self.lines:
            c = Ins(l)
            if c.op is not None:
                d = 0
                req = 0
                skip = None
                for p in reversed(out):
                    if skip:
                        if p.op == "s_branch" and p.ops[0] == skip:
                            skip = None
                            d += 1
                        continue
                    if p.label and p.label.startswith("L_over"):
                        skip = p.label
                        continue
                    if p.op is None:
                        continue
                    if p.op in ("s_branch", "s_endpgm"):
                        break
                    k = need(p, c)
                    if k - d > req:
                        req = k - d
                    d += p.states()
                    if d > 14:
                        break
                if req > 0:
                    out.append(Ins(f"s_nop {req-1}"))
            out.append(c)
        lab = {x.label: i for i, x in enumerate(out) if x.label}
        for i, b in enumerate(out):
            if b.op and b.op.startswith(("s_branch", "s_cbranch")):
                t = lab[b.ops[0]]
                dc = 0
                for c in out[t:t + 40]:
                    if c.op is None:
                        continue
                    d = dc + 1
                    for p in reversed(out[:i]):
                        if p.op is None:
                            continue
                        if p.op in ("s_branch", "s_endpgm"):
                            break
                        if need(p, c) > d:
                            raise RuntimeError(f"hazard across branch {b.text}: {p.text} -> {c.text}")
                        d += p.states()
                        if d > 14:
                            break
                    dc += c.states()
                    if dc > 14 or c.op in ("s_branch", "s_endpgm"):
                        break
        return out

    def text(self):
        res = []
        for x in self.padded():
            t = x.text
            if x.op is not None:
                t = "    " + t
            res.append(t)
        return "\n".join(res) + "\n"
```

```python
import sys, math, struct, subprocess
from asmlib import Asm

NAME = "sequential_preLN__mha_block_cached__geglu_ffn__decode"
f2u = lambda x: struct.unpack("<I", struct.pack("<f", x))[0]
hx = lambda x: "0x%08x" % (x & 0xFFFFFFFF)

WS_EPOCH = 0
WS_CL = 0x2000
WS_ML = 0x8000
WS_QX = 0x10000
WS_H1 = 0x50000
WS_H2 = 0x90000
WS_H3 = 0x9E000
WS_END = 0x110000
TS_OFF = 256 << 20
SENT = 0x7FD5A5A5
OOB = 0x7FF00000

RING = 9
RINGB = RING * 16384
L_WQ = 8 * 16384
L_LN1 = L_WQ + 14336
L_W = (64 % RING) * 16384
L_FLAG = RINGB
L_Q = L_FLAG + 64
L_P = L_Q + 512
L_O = L_P + 2048
L_ST = L_O + 1024
L_LN2 = L_ST + 64
L_RED = L_LN2 + 2048
LDS_BYTES = L_RED + 1024
DPPM = "row_mask:0xf bank_mask:0xf"


class G:
    def __init__(s, N=19, N2=19, R=0, NWT=1, ts=False, spin_lds=1 << 22, spin_g=1 << 17, opts=(), **kw):
        s.N, s.N2, s.R, s.NWT, s.ts, s.spin_lds, s.spin_g, s.opts = N, N2, R, NWT, ts, spin_lds, spin_g, opts
        s.kw = kw
        s.ctl = kw.get("ctl", 0)
        s.NS = [N] + ([N - 1, N - 2, N + 2, N + 4] if s.ctl else []) + ([N2] if R else [])
        s.a = Asm()
        s.uid = 0
        s.pads = []

    def lab(s, p):
        s.uid += 1
        return f"L_{p}{s.uid}"

    def TS(s, slot):
        if s.ts:
            s.a(f"s_memrealtime s[{64+2*slot}:{65+2*slot}]\ns_waitcnt lgkmcnt(0)")

    def TS_store(s):
        if not s.ts:
            return
        a = s.a
        a("s_mov_b64 exec, 1")
        a("s_getreg_b32 s94, hwreg(HW_REG_XCC_ID, 0, 4)\ns_mov_b32 s95, -1")
        a(f"s_lshl_b32 s48, s2, 3\ns_add_u32 s48, s48, s3\ns_lshl_b32 s48, s48, 7\ns_add_u32 s48, s48, {TS_OFF}\nv_mov_b32 v2, 0")
        a("s_load_dwordx2 s[32:33], s[0:1], 88\ns_waitcnt lgkmcnt(0)\ns_and_b32 s33, s33, 0xffff\ns_mov_b32 s34, 0x20000000\ns_mov_b32 s35, 0x20000")
        for k in range(0, 16, 2):
            a(f"v_mov_b32 v4, s{64+2*k}\nv_mov_b32 v5, s{65+2*k}\nv_mov_b32 v6, s{66+2*k}\nv_mov_b32 v7, s{67+2*k}")
            a(f"buffer_store_dwordx4 v[4:7], v2, s[32:35], s48 offen offset:{8*k}\ns_nop 1")
        a("s_waitcnt vmcnt(0)\ns_mov_b64 exec, -1")

    def srd(s, d, p, size):
        s.a(f"s_mov_b32 s{d}, s{p}\ns_and_b32 s{d+1}, s{p+1}, 0xffff\ns_mov_b32 s{d+2}, {size}\ns_mov_b32 s{d+3}, 0x20000")

    def pad(s, name, inline=False):
        s.a(f"@PAD {name} {int(inline)}")

    def dpp_red(s, op, v, modes):
        for m in modes:
            for r in v:
                s.a(f"{op}_dpp v{r}, v{r}, v{r} {m} {DPPM}")

    def red16(s, op, v):
        s.dpp_red(op, v, ("quad_perm:[1,0,3,2]", "quad_perm:[2,3,0,1]", "row_half_mirror", "row_mirror"))

    def xrow(s, op, v, tmp, which):
        for r, t in zip(v, tmp):
            s.a(f"v_mov_b32 v{t}, v{r}")
        for r, t in zip(v, tmp):
            s.a(f"v_permlane{which}_swap_b32 v{r}, v{t}")
        for r, t in zip(v, tmp):
            s.a(f"{op} v{r}, v{r}, v{t}")

    def rnd2(s, x, y, t):
        s.a(f"v_cvt_pk_bf16_f32 v{t}, v{x}, v{y}\nv_lshlrev_b32 v{x}, 16, v{t}\nv_and_b32 v{y}, 0xffff0000, v{t}")

    def rnd4(s, x, t, u):
        s.a(f"v_cvt_pk_bf16_f32 v{t}, v{x}, v{x+1}\nv_cvt_pk_bf16_f32 v{u}, v{x+2}, v{x+3}")
        s.a(f"v_lshlrev_b32 v{x}, 16, v{t}\nv_and_b32 v{x+1}, 0xffff0000, v{t}\nv_lshlrev_b32 v{x+2}, 16, v{u}\nv_and_b32 v{x+3}, 0xffff0000, v{u}")

    def rnd1(s, x):
        s.a(f"v_cvt_pk_bf16_f32 v{x}, v{x}, v{x}\nv_and_b32 v{x}, 0xffff0000, v{x}")

    def lds_wait_gt(s, off, sval, scache, vt, cached=True):
        a = s.a
        ok, lp = s.lab("ok"), s.lab("lp")
        if cached:
            a(f"s_cmp_gt_i32 s{scache}, {sval}\ns_cbranch_scc1 {ok}")
        a(f"s_mov_b32 s29, {s.spin_lds}")
        a(f"{lp}:")
        a(f"ds_read_b32 v{vt}, v1 offset:{off}\ns_sub_u32 s29, s29, 1\ns_cbranch_scc1 L_end\ns_waitcnt lgkmcnt(0)\nv_readfirstlane_b32 s{scache}, v{vt}")
        a(f"s_cmp_gt_i32 s{scache}, {sval}\ns_cbranch_scc0 {lp}")
        a(f"{ok}:")

    def tag(s):
        s.a("s_mul_i32 s28, s28, 1664525\ns_add_u32 s28, s28, 1013904223")

    def cons_setup(s):
        a = s.a
        a("s_waitcnt lgkmcnt(0)")
        a(f"s_load_dword s28, s[26:27], {WS_EPOCH}")
        s.srd(32, 26, WS_END)
        a("v_and_b32 v2, 15, v0\nv_lshrrev_b32 v3, 4, v0\ns_sub_u32 s30, s3, 1")

    def poll_sum(s, name, loads, base, acc, masks, always, depth=1):
        a = s.a
        n = len(loads)
        P = lambda r: f"v[{r}:{r+1}]"
        t = acc + 4
        a(f"s_mov_b32 s29, {s.spin_g}")

        def sums(wait):
            for k in range(n):
                d = base + 4 * k
                if k == 1 or k == 3:
                    o = acc if k == 1 else t
                    wait(k)
                    a(f"v_pk_add_f32 {P(o)}, {P(d-4)}, {P(d)}\nv_pk_add_f32 {P(o+2)}, {P(d-2)}, {P(d+2)}")
                elif k >= 4:
                    o = acc if k % 2 == 0 else t
                    wait(k)
                    a(f"v_pk_add_f32 {P(o)}, {P(o)}, {P(d)}\nv_pk_add_f32 {P(o+2)}, {P(o+2)}, {P(d+2)}")
            a(f"v_pk_add_f32 {P(acc)}, {P(acc)}, {P(t)}\nv_pk_add_f32 {P(acc+2)}, {P(acc+2)}, {P(t+2)}")
        if depth == 1:
            for m in masks:
                a(f"s_mov_b64 s[{m}:{m+1}], -1")
            a(f"L_{name}:")
            for k, l in enumerate(loads):
                a(f"s_or_b64 exec, s[{masks[k]}:{masks[k]+1}], {always}")
                a(l)
            a("s_mov_b64 exec, -1")
            sums(lambda k: a(f"s_waitcnt vmcnt({n-1-k})"))
            a(f"v_pk_add_f32 {P(t)}, {P(acc)}, {P(acc+2)}")
            if "notail" in s.opts:
                a(f"s_branch L_{name}ok")
            a(f"v_cmp_u_f32 vcc, v{t}, v{t+1}\ns_cbranch_vccz L_{name}ok")
            s.pad(name + "r", inline=True)
            for k in range(n):
                d = base + 4 * k
                o = t + 2 * (k & 1)
                a(f"v_pk_add_f32 {P(o)}, {P(d)}, {P(d+2)}\nv_cmp_u_f32 s[{masks[k]}:{masks[k]+1}], v{o}, v{o+1}")
            a(f"s_sub_u32 s29, s29, 1\ns_cbranch_scc0 L_{name}")
            a(f"L_{name}ok:")
            return
        for l in loads:
            a(l)
        a("s_waitcnt vmcnt(0)")
        a(f"L_{name}:")
        a("s_mov_b64 s[98:99], 0")
        for k in range(n + 1):
            if k < n:
                d = base + 4 * k
                o = t + 2 * (k & 1)
                m = masks[k & 1]
                a(f"s_waitcnt vmcnt({min(63, depth*n - 2)})")
                a(f"v_pk_add_f32 {P(o)}, {P(d)}, {P(d+2)}\nv_cmp_u_f32 s[{m}:{m+1}], v{o}, v{o+1}")
            if k > 0:
                m = masks[(k - 1) & 1]
                a(f"s_or_b64 exec, s[{m}:{m+1}], {always}")
                a(loads[k - 1])
                a(f"s_mov_b64 exec, -1\ns_or_b64 s[98:99], s[98:99], s[{m}:{m+1}]")
        if "notail" not in s.opts:
            a(f"s_cbranch_scc0 L_{name}ok")
            a(f"s_sub_u32 s29, s29, 1\ns_cbranch_scc0 L_{name}")
        a(f"L_{name}ok:")
        s.pad(name + "r", inline=True)
        sums(lambda k: None)

    def ffn_index(s, d):
        s.a(f"s_and_b32 s51, s2, 3\ns_mul_i32 s51, s51, 28\ns_lshr_b32 s50, s2, 3\ns_add_u32 s{d}, s50, s51")

    def entry(s):
        a, opts = s.a, s.opts
        a(f"{NAME}_kernel:")
        a("s_cmp_ge_u32 s2, 256\ns_cbranch_scc1 L_end")
        a("s_load_dwordx16 s[4:19], s[0:1], 0\ns_load_dwordx8 s[20:27], s[0:1], 64")
        if s.ts:
            a("s_memrealtime s[64:65]")
        a("v_lshrrev_b32 v2, 6, v0\nv_and_b32 v0, 63, v0\nv_readfirstlane_b32 s3, v2")
        a(f"v_mov_b32 v1, {L_FLAG}")
        a("s_cmp_eq_u32 s3, 5\ns_cbranch_scc1 P_3")
        a("s_cmp_eq_u32 s3, 3\ns_cbranch_scc1 P_0")
        a("s_cmp_eq_u32 s3, 4\ns_cbranch_scc1 P_1")
        a("s_cmp_eq_u32 s3, 1\ns_cbranch_scc1 P_2")
        a("s_cmp_eq_u32 s3, 0\ns_cbranch_scc1 L_loader")
        a("v_cmp_gt_u32 s[56:57], 56, v0\nv_mov_b32 v4, 0\nv_mov_b32 v5, -1\nv_mov_b32 v6, 32\nv_mov_b32 v7, 32\nv_mov_b32 v8, -2")
        a("ds_write_b128 v1, v[4:7] offset:16\nds_write_b32 v1, v8\nds_write_b64 v1, v[4:5] offset:32\nds_write_b64 v1, v[4:5] offset:40")
        a(f"v_lshlrev_b32 v9, 4, v0\nv_mov_b32 v10, {OOB}\nv_cndmask_b32 v9, v10, v9, s[56:57]")
        a("s_mov_b32 s42, 1792\ns_mov_b32 s43, 0x20000\ns_waitcnt lgkmcnt(0)\ns_mov_b32 s40, s4\ns_and_b32 s41, s5, 0xffff")
        a("buffer_load_dwordx4 v[12:15], v9, s[40:43], 0 offen offset:896\nbuffer_load_dwordx4 v[8:11], v9, s[40:43], 0 offen")
        a("s_barrier\ns_branch L_qprod")
        a("L_loader:")
        a("s_setprio 3")
        a("v_lshrrev_b32 v17, 3, v0\nv_and_b32 v18, 6, v17\nv_and_b32 v19, 7, v0\nv_xor_b32 v18, v18, v19\nv_lshlrev_b32 v17, 13, v17\nv_lshl_add_u32 v17, v18, 4, v17")
        a(f"s_bfe_u32 s50, s2, 0x20001\ns_mul_i32 s52, s50, {112*8192}\ns_lshr_b32 s51, s2, 3\ns_lshl_b32 s51, s51, 7\ns_add_u32 s52, s52, s51\ns_and_b32 s53, s2, 1\ns_lshl_b32 s53, s53, 12\ns_add_u32 s52, s52, s53")
        a(f"s_mov_b32 m0, {L_WQ}\ns_mov_b32 s42, {448*8192}\ns_mov_b32 s43, 0x20000\ns_mov_b32 s50, 13")
        a("s_waitcnt lgkmcnt(0)\ns_mov_b32 s40, s10\ns_and_b32 s41, s11, 0xffff")
        if "noqp" not in opts:
            a("L_wq:")
            a("buffer_load_dwordx4 v17, s[40:43], s52 offen nt lds")
            a("s_add_u32 s52, s52, 65536\ns_add_u32 m0, m0, 1024\ns_sub_u32 s50, s50, 1\ns_cbranch_scc0 L_wq")
        a("v_lshrrev_b32 v2, 5, v0\nv_and_b32 v3, 31, v0\nv_lshlrev_b32 v30, 9, v2\nv_xor_b32 v28, v2, v3\nv_lshl_or_b32 v8, v28, 4, v30")
        for j in range(1, 8):
            a(f"v_xor_b32 v{8+j}, {32*j}, v8")
        a("v_mov_b32 v24, 0\nv_mov_b32 v25, 0\nv_mov_b32 v26, 0\nv_mov_b32 v27, 0\nv_mov_b32 v32, 0\nv_mov_b32 v33, 0")
        a("s_lshl_b32 s49, s2, 19\ns_mov_b32 s48, 0\ns_mov_b32 s54, 0")
        s.pad("ld00", inline=True)
        s.srd(36, 6, 0x8000000)
        s.pad("ld0", inline=True)
        s.zero_ts()
        s.TS(4)
        RG = RING if "nocons" not in opts else 100

        NS = s.NS

        def body(k, N):
            jpub = (N - 1) % 16
            assert (N - 1) // 16 == 1
            a(f"L_body{k}:")
            for j in range(16):
                a(f"s_waitcnt vmcnt({N-1})")
                a(f"buffer_load_dwordx4 v{8+(j&7)}, s[36:39], s49 offen offset:{(j&3)*1024} nt lds")
                if j == jpub:
                    a("ds_write_b32 v1, v29")
                if k == 0 and j == N - 15:
                    a("s_cmp_eq_u32 s48, 0\ns_cbranch_scc1 L_bar0\nL_bar0r:")
                if j == 11:
                    a("ds_read_b128 v[24:27], v1 offset:16\nds_read_b64 v[32:33], v1 offset:40")
                if (j & 3) == 3:
                    a("s_add_u32 s49, s49, 4096")
                    if j != 15:
                        a("s_add_u32 m0, m0, 4096")

        assert NS[0] - 15 < 11
        if "tailonly" in opts:
            a("s_barrier\nv_mov_b32 v24, 64\nv_mov_b32 v25, 64\nv_mov_b32 v26, 64\nv_mov_b32 v27, 64\ns_branch L_ltail")
        a("L_slot:")
        a("s_waitcnt lgkmcnt(0)")
        a("v_min3_i32 v28, v24, v25, v26\nv_readfirstlane_b32 s52, v32\nv_min_i32 v28, v28, v27\nv_readfirstlane_b32 s53, v33\nv_readfirstlane_b32 s50, v28")
        a(f"s_mov_b32 m0, s54\ns_add_u32 s50, s50, {RG}\ns_cmp_gt_i32 s50, s48\ns_cbranch_scc0 L_full")
        a(f"s_sub_u32 s51, s48, 1\nv_mov_b32 v29, s51\ns_mov_b32 s29, {s.spin_lds}")
        if s.R:
            a(f"s_cmp_ge_u32 s48, {64-s.R}\ns_cbranch_scc1 L_body{len(NS)-1}")
        if s.ctl:
            a("s_cmp_lt_i32 s48, s53\ns_cselect_b32 s52, s52, 0")
            for k in range(1, 5):
                a(f"s_cmp_eq_u32 s52, {k}\ns_cbranch_scc1 L_body{k}")
        body(0, NS[0])
        a("L_next:")
        a(f"s_add_u32 s54, s54, 16384\ns_cmp_eq_u32 s54, {RINGB}\ns_cselect_b32 s54, 0, s54\ns_add_u32 s48, s48, 1")
        a("s_and_b32 s50, s48, 31\ns_cbranch_scc1 L_slot")
        a("s_cmp_eq_u32 s48, 64\ns_cbranch_scc1 L_ltail")
        s.TS(1)
        a("s_mov_b32 s36, s8\ns_and_b32 s37, s9, 0xffff\ns_lshl_b32 s49, s2, 19")
        a("v_lshlrev_b32 v28, 1, v2\nv_xor_b32 v28, v28, v3\nv_lshl_or_b32 v8, v28, 4, v30")
        for j in range(1, 8):
            a(f"v_xor_b32 v{8+j}, {64*(j&3)}, v8")
        a("s_branch L_slot")
        a("L_bar0:\ns_barrier\ns_branch L_bar0r")
        a("L_full:")
        a("ds_read_b128 v[24:27], v1 offset:16\ns_sub_u32 s29, s29, 1\ns_cbranch_scc0 L_slot\ns_endpgm")
        s.body = body
        NL = 17

        a("L_ltail:")
        s.TS(2)
        a("v_mov_b32 v20, 63\nv_mov_b32 v21, 64\nv_mov_b32 v22, 62")
        s.srd(44, 20, 1792 * 896)
        a("s_bitcmp0_b32 s2, 2\ns_cbranch_scc1 L_lt_f")
        s.srd(40, 12, 4096 * 896)
        a("v_lshrrev_b32 v16, 3, v0\nv_and_b32 v18, 6, v16\nv_and_b32 v19, 7, v0\nv_xor_b32 v18, v18, v19\nv_mul_u32_u24 v16, 896, v16\nv_lshl_add_u32 v16, v18, 4, v16")
        a(f"s_and_b32 s50, s2, 3\ns_lshl_b32 s50, s50, 2\ns_bfe_u32 s51, s2, 0x20003\ns_add_u32 s50, s50, s51\ns_mul_i32 s49, s50, {256*896}\ns_lshr_b32 s50, s2, 5\ns_lshl_b32 s50, s50, 7\ns_add_u32 s49, s49, s50")
        a("s_branch L_lt_c")
        a("L_lt_f:")
        s.srd(36, 16, 448 * 3584)
        s.srd(40, 18, 448 * 3584)
        s.ffn_index(52)
        a("v_lshrrev_b32 v16, 1, v0\nv_mul_u32_u24 v16, 3584, v16\nv_and_b32 v17, 1, v0\nv_lshl_add_u32 v16, v17, 4, v16\nv_lshlrev_b32 v17, 4, v0")
        a(f"s_lshl_b32 s49, s52, 5\ns_mul_i32 s55, s52, {16*896}")
        a("L_lt_c:")
        a("s_cmp_ge_u32 s2, 224\ns_cbranch_scc1 L_lt_ffn")
        a(f"s_mov_b32 s29, {s.spin_lds}\ns_mov_b32 m0, {L_W}")
        a("L_lt_chk:")
        a("s_waitcnt lgkmcnt(0)\nv_min3_i32 v28, v24, v25, v26\nv_min_i32 v28, v28, v27\nv_readfirstlane_b32 s50, v28")
        a(f"s_cmp_ge_i32 s50, {67-RING}\ns_cbranch_scc1 L_lt_go")
        a("ds_read_b128 v[24:27], v1 offset:16\ns_sub_u32 s29, s29, 1\ns_cbranch_scc0 L_lt_chk\ns_endpgm")
        s.pad("ld2")
        a("L_lt_go:")
        a("s_bitcmp0_b32 s2, 2\ns_cbranch_scc1 L_lt_ffn")
        early = "wlate" not in opts
        if not early:
            a("s_waitcnt vmcnt(16)\nds_write_b32 v1, v20\ns_waitcnt vmcnt(0)\nds_write_b32 v1, v21")
            s.TS(5)
        else:
            a("s_waitcnt vmcnt(16)\nds_write_b32 v1, v20")
        a("s_mov_b32 s50, 31")
        a("L_lt_o:")
        a("buffer_load_dwordx4 v16, s[40:43], s49 offen nt lds")
        a(f"s_add_u32 s49, s49, {8*896}\ns_add_u32 m0, m0, 1024\ns_sub_u32 s50, s50, 1\ns_cbranch_scc0 L_lt_o")
        if early:
            a("s_waitcnt vmcnt(32)\nds_write_b32 v1, v21")
            s.TS(5)
        a("s_branch L_lt_done")
        a("L_lt_ffn:")
        a("s_waitcnt vmcnt(16)\nds_write_b32 v1, v20\ns_waitcnt vmcnt(0)\nds_write_b32 v1, v21")
        s.TS(5)
        a("s_cmp_ge_u32 s2, 224\ns_cbranch_scc1 L_lt_done")
        gpol = "nt" if "gnt" in opts else ""
        a("s_mov_b32 s50, 13")
        a("L_lt_g:")
        a(f"buffer_load_dwordx4 v16, s[36:39], s49 offen {gpol} lds\ns_add_u32 m0, m0, 14336\ns_nop 0")
        a(f"buffer_load_dwordx4 v16, s[40:43], s49 offen {gpol} lds")
        a(f"s_add_u32 s49, s49, {32*3584}\ns_sub_u32 m0, m0, {14336-1024}\ns_sub_u32 s50, s50, 1\ns_cbranch_scc0 L_lt_g")
        a(f"s_mov_b32 m0, {L_W+2*14336}\ns_mov_b32 s50, 13")
        a("L_lt_d:")
        a("buffer_load_dwordx4 v17, s[44:47], s55 offen nt lds")
        a("s_add_u32 s55, s55, 1024\ns_add_u32 m0, m0, 1024\ns_sub_u32 s50, s50, 1\ns_cbranch_scc0 L_lt_d")
        a("L_lt_done:")
        a("s_waitcnt vmcnt(0) lgkmcnt(0)")
        s.TS(3)
        a("s_barrier")
        a("s_branch L_fin")
    def qprod(s):
        a, opts = s.a, s.opts
        s.pad("q0")
        a("L_qprod:")
        s.zero_ts()
        s.cons_setup()
        if "noqp" in opts:
            a("v_mov_b32 v7, 32\nds_write_b32 v1, v7 offset:20\nds_write_b32 v1, v7 offset:36\ns_waitcnt lgkmcnt(0) vmcnt(0)")
            s.tag()
            if "tailonly" in opts:
                a("s_sleep 127\ns_sleep 127")
            a("s_branch L_vwait")
        a("s_bfe_u32 s50, s2, 0x20001\ns_lshr_b32 s51, s2, 3\ns_and_b32 s53, s2, 1\ns_lshl_b32 s53, s53, 5\ns_add_u32 s51, s51, s53")
        a(f"v_lshlrev_b32 v44, 4, v0\nv_add_u32 v44, {L_LN1}, v44")
        a(f"v_and_b32 v4, 1, v0\nv_mul_u32_u24 v45, 896, v4\nv_lshl_add_u32 v45, v3, 3, v45\ns_mul_i32 s52, s50, 224\ns_add_u32 s52, s52, {L_LN1}\nv_add_u32 v45, s52, v45")
        a(f"v_lshrrev_b32 v5, 2, v0\nv_lshlrev_b32 v5, 7, v5\nv_and_b32 v6, 3, v0\nv_lshl_add_u32 v5, v6, 3, v5\nv_bfe_u32 v6, v0, 3, 2\nv_lshl_add_u32 v5, v6, 5, v5")
        for ct in range(4):
            a(f"v_xor_b32 v{40+ct}, {32*ct}, v5\nv_add_u32 v{40+ct}, {L_WQ}, v{40+ct}")
        a("v_lshlrev_b32 v46, 17, v4\nv_lshrrev_b32 v5, 2, v2\nv_lshl_add_u32 v46, v5, 7, v46\nv_lshl_add_u32 v46, v3, 5, v46\nv_bfe_u32 v6, v2, 1, 1\nv_lshl_add_u32 v46, v6, 4, v46")
        a(f"s_lshr_b32 s52, s51, 2\ns_lshl_b32 s52, s52, 13\ns_lshl_b32 s53, s50, 11\ns_add_u32 s52, s52, s53\ns_and_b32 s53, s51, 3\ns_lshl_b32 s53, s53, 9\ns_add_u32 s52, s52, s53\ns_add_u32 s52, s52, {WS_QX}")
        a("v_cmp_eq_u32 s[58:59], 1, v6")
        a(f"s_mov_b32 s54, {hx(f2u(1/448))}")
        s.pad("q0b", inline=True)
        a("s_waitcnt vmcnt(0)")
        s.TS(1)
        for k in range(8):
            a(f"v_lshlrev_b32 v{16+2*k}, 16, v{8+k}\nv_and_b32 v{17+2*k}, 0xffff0000, v{8+k}")
        P = lambda r: f"v[{r}:{r+1}]"
        for b in range(2):
            o = 16 + 8 * b
            a(f"v_pk_add_f32 {P(48)}, {P(o)}, {P(o+2)}\nv_pk_add_f32 {P(50)}, {P(o+4)}, {P(o+6)}\nv_pk_add_f32 {P(48)}, {P(48)}, {P(50)}\nv_add_f32 v{32+2*b}, v48, v49")
        s.red16("v_add_f32", [32, 34])
        s.xrow("v_add_f32", [32, 34], [48, 49], 16)
        s.xrow("v_add_f32", [32, 34], [48, 49], 32)
        a("v_mul_f32 v32, s54, v32\nv_mul_f32 v34, s54, v34\nv_mov_b32 v33, v32\nv_mov_b32 v35, v34")
        for b in range(2):
            o = 16 + 8 * b
            for k in range(4):
                a(f"v_pk_add_f32 {P(48+2*k)}, {P(o+2*k)}, {P(32+2*b)} neg_lo:[0,1] neg_hi:[0,1]")
            a(f"v_pk_mul_f32 {P(56)}, {P(48)}, {P(48)}")
            for k in range(1, 4):
                a(f"v_pk_fma_f32 {P(56)}, {P(48+2*k)}, {P(48+2*k)}, {P(56)}")
            a(f"v_add_f32 v56, v56, v57\nv_cndmask_b32 v{36+2*b}, 0, v56, s[56:57]")
        s.pad("q1", inline=True)
        s.red16("v_add_f32", [36, 38])
        s.xrow("v_add_f32", [36, 38], [48, 49], 16)
        s.xrow("v_add_f32", [36, 38], [48, 49], 32)
        a("v_mul_f32 v36, s54, v36\nv_mul_f32 v38, s54, v38")
        s.rnd2(32, 34, 48)
        s.rnd2(36, 38, 48)
        a(f"v_add_f32 v36, {hx(f2u(1e-5))}, v36\nv_add_f32 v38, {hx(f2u(1e-5))}, v38\nv_mov_b32 v33, v32\nv_mov_b32 v35, v34")
        s.rnd2(36, 38, 48)
        a("v_sqrt_f32 v36, v36\nv_sqrt_f32 v38, v38")
        for b in range(2):
            o = 16 + 8 * b
            for k in range(4):
                a(f"v_pk_add_f32 {P(o+2*k)}, {P(o+2*k)}, {P(32+2*b)} neg_lo:[0,1] neg_hi:[0,1]")
        s.rnd2(36, 38, 48)
        a("v_rcp_f32 v36, v36\nv_rcp_f32 v38, v38")
        for o in (16, 20, 24, 28):
            s.rnd4(o, 48, 49)
        a("v_mov_b32 v37, v36\nv_mov_b32 v39, v38")
        for b in range(2):
            o = 16 + 8 * b
            for k in range(4):
                a(f"v_pk_mul_f32 {P(o+2*k)}, {P(o+2*k)}, {P(36+2*b)}")
        for k in range(8):
            a(f"v_cvt_pk_bf16_f32 v{8+k}, v{16+2*k}, v{17+2*k}")
        a("s_mov_b64 exec, s[56:57]\nds_write_b128 v44, v[8:11]\nds_write_b128 v44, v[12:15] offset:896\ns_mov_b64 exec, -1")
        for m in range(7):
            a(f"ds_read_b64 v[{16+2*m}:{17+2*m}], v45 offset:{m*32}")
        s.pad("q1b", inline=True)
        s.TS(2)
        s.lds_wait_gt(0, "-1", 31, 7, cached=False)
        s.TS(3)
        for m in range(7):
            for ct in range(4):
                d = 64 + 2 * (ct * 7 + m)
                a(f"ds_read_b64_tr_b16 v[{d}:{d+1}], v{40+ct} offset:{m*2048}")
        s.tag()
        s.pad("q2", inline=True)
        a("s_mov_b32 s60, 0x000f000f\ns_mov_b32 s61, 0x000f000f")
        a("v_mov_b32 v7, 32\nv_mov_b32 v9, s28\nv_mov_b32 v11, s28")
        a("s_waitcnt lgkmcnt(0)\nds_write_b32 v1, v7 offset:20")
        for m in range(7):
            for ct in range(4):
                d = 64 + 2 * (ct * 7 + m)
                D = 48 + 4 * ct
                c = "0" if m == 0 else f"v[{D}:{D+3}]"
                a(f"v_mfma_f32_16x16x16_bf16 v[{D}:{D+3}], v[{d}:{d+1}], v[{16+2*m}:{17+2*m}], {c}")
        for ct in range(1, 4):
            a("s_lshl_b64 s[60:61], s[60:61], 4")
            for r in range(4):
                a(f"v_cndmask_b32 v{48+r}, v{48+r}, v{48+4*ct+r}, s[60:61]")
        a("v_cndmask_b32 v8, v48, v50, s[58:59]\nv_cndmask_b32 v10, v49, v51, s[58:59]")
        if "noqst" not in opts:
            a("buffer_store_dwordx4 v[8:11], v46, s[32:35], s52 offen sc1")
        s.TS(7)
        a("s_waitcnt vmcnt(0)\nds_write_b32 v1, v7 offset:36")
        s.TS(4)
        a("s_branch L_vwait")

    def zero_ts(s):
        if s.ts:
            for r in range(66, 96, 2):
                s.a(f"s_mov_b64 s[{r}:{r+1}], 0")

    def kphase(s):
        a, opts = s.a, s.opts
        s.pad("w1")
        a("L_w1:")
        s.zero_ts()
        s.cons_setup()
        a(f"s_lshr_b32 s48, s2, 3\ns_lshl_b32 s48, s48, 13\ns_add_u32 s48, s48, {WS_QX}\ns_add_u32 s49, s48, 4096")
        a("v_lshlrev_b32 v4, 4, v0\nv_xor_b32 v5, v3, v2\nv_lshlrev_b32 v6, 9, v2\nv_lshl_or_b32 v8, v5, 4, v6")
        for tt in range(1, 4):
            a(f"v_xor_b32 v{8+tt}, {64*tt}, v8")
        a(f"v_lshlrev_b32 v14, 2, v0\nv_lshlrev_b32 v15, 4, v3\nv_add_u32 v14, {L_Q}, v14\nv_add_u32 v15, {L_Q}, v15")
        s.pad("w1b", inline=True)
        s.lds_wait_gt(36, "0", 31, 7, cached=False)
        s.tag()
        if "tailonly" in opts:
            a("s_sleep 127\ns_sleep 127\ns_branch L_vwait")
        a(f"s_mov_b32 s29, {s.spin_g}")
        if "noq" in opts:
            a("s_branch L_qok")
        a("L_qpoll:")
        for k in range(8):
            a(f"buffer_load_dwordx4 v[{32+4*k}:{35+4*k}], v4, s[32:35], s{48+(k>>2)} offen offset:{(k&3)*1024} sc1")
        a("s_sub_u32 s29, s29, 1\ns_cbranch_scc1 L_end\nv_mov_b32 v7, 0")
        for k in range(8):
            a(f"s_waitcnt vmcnt({7-k})\nv_xor_b32 v12, s28, v{33+4*k}\nv_xor_b32 v13, s28, v{35+4*k}\nv_or3_b32 v7, v7, v12, v13")
        a("v_cmp_ne_u32 vcc, 0, v7\ns_cbranch_vccnz L_qpoll")
        a("L_qok:")
        for half in range(2):
            for e in (0, 2):
                r = [32 + 4 * (kq * 2 + half) + e for kq in range(4)]
                a(f"v_add_f32 v{r[0]}, v{r[0]}, v{r[1]}\nv_add_f32 v{r[2]}, v{r[2]}, v{r[3]}\nv_add_f32 v{r[0]}, v{r[0]}, v{r[2]}")
            a(f"v_cvt_pk_bf16_f32 v{12+half}, v{32+4*half}, v{34+4*half}")
        a("ds_write_b32 v14, v12\nds_write_b32 v14, v13 offset:256")
        for t in range(8):
            a(f"ds_read_b128 v[{32+4*t}:{35+4*t}], v15 offset:{t*64}")
        s.TS(4)
        a("s_mov_b32 s48, 0\ns_mov_b32 s31, 0\ns_mov_b32 s55, 0")
        a("s_mov_b32 s52, 0x00010001\ns_mov_b32 s53, 0x00010001")
        s.pad("k0", inline=True)
        a("L_k:")
        for tt in range(4):
            a(f"v_add_u32 v{12+tt}, s55, v{8+tt}")
        s.lds_wait_gt(0, "s48", 31, 7)
        for t in range(8):
            for tau in range(2):
                d = 64 + 8 * t + 4 * tau
                a(f"ds_read_b128 v[{d}:{d+3}], v{12+(t&3)} offset:{(t>>2)*256+tau*8192}")
        a(f"s_add_u32 s48, s48, 1\nv_mov_b32 v7, s48\ns_add_u32 s55, s55, 16384\ns_cmp_eq_u32 s55, {RINGB}\ns_cselect_b32 s55, 0, s55")
        for t in range(8):
            if t in (0, 2, 4, 6):
                a(f"s_waitcnt lgkmcnt({12-2*t})")
            if t == 6:
                a("ds_write_b32 v1, v7 offset:16")
            for tau in range(2):
                d = 64 + 8 * t + 4 * tau
                D = 128 + 4 * tau
                c = "0" if t == 0 else f"v[{D}:{D+3}]"
                a(f"v_mfma_f32_16x16x32_bf16 v[{D}:{D+3}], v[{d}:{d+3}], v[{32+4*t}:{35+4*t}], {c}")
        for r in range(8):
            a(f"v_cndmask_b32 v{16+r}, v{16+r}, v{128+r}, s[52:53]")
        a("s_lshl_b64 s[52:53], s[52:53], 1")
        a("s_and_b32 s50, s48, 15\ns_cbranch_scc1 L_k")
        a("s_cmp_eq_u32 s48, 32\ns_cbranch_scc1 L_kdone")
        for r in range(8):
            a(f"v_mov_b32 v{24+r}, v{16+r}")
        a("s_mov_b32 s52, 0x00010001\ns_mov_b32 s53, 0x00010001\ns_branch L_k")
        s.pad("k1")
        a("L_kdone:")
        if s.ctl:
            a("s_memrealtime s[56:57]")
        s.TS(5)
        for r in range(16, 32, 4):
            s.rnd4(r, 6, 7)
        a("v_max3_f32 v12, v16, v17, v18\nv_max3_f32 v13, v24, v25, v26")
        a("v_max3_f32 v12, v12, v19, v20\nv_max3_f32 v13, v13, v27, v28\nv_max3_f32 v12, v12, v21, v22\nv_max3_f32 v13, v13, v29, v30")
        a("v_max3_f32 v12, v12, v23, v31\nv_max_f32 v12, v12, v13")
        s.red16("v_max_f32", [12])
        s.xrow("v_max_f32", [12], [13], 16)
        s.xrow("v_max_f32", [12], [13], 32)
        a(f"s_mov_b32 s54, {hx(f2u(math.log2(math.e)/16))}")

        def exps():
            for r in range(16):
                a(f"v_sub_f32 v{64+r}, v{16+r}, v12")
            for r in range(16):
                a(f"v_mul_f32 v{64+r}, s54, v{64+r}")
            for r in range(16):
                a(f"v_exp_f32 v{64+r}, v{64+r}")
        exps()
        for st in (8, 4, 2):
            for r in range(0, st, 2):
                a(f"v_pk_add_f32 v[{64+r}:{65+r}], v[{64+r}:{65+r}], v[{64+r+st}:{65+r+st}]")
        a("v_add_f32 v14, v64, v65")
        s.red16("v_add_f32", [14])
        s.xrow("v_add_f32", [14], [13], 16)
        s.xrow("v_add_f32", [14], [13], 32)
        MLS = s.kw.get("MLS", 7)
        a("v_mov_b32 v13, s28\nv_mov_b32 v15, s28")
        a(f"s_lshl_b32 s50, s2, {MLS}\ns_add_u32 s50, s50, {WS_ML}\nv_mov_b32 v7, 0")
        if s.ctl:
            a("s_waitcnt lgkmcnt(0)\nv_mov_b32 v68, v12\nv_writelane_b32 v12, s56, 1\nv_lshlrev_b32 v7, 4, v0")
            a("s_mov_b64 exec, 3\nbuffer_store_dwordx4 v[12:15], v7, s[32:35], s50 offen sc1\ns_mov_b64 exec, -1")
        elif "noqst" not in opts:
            a("s_mov_b64 exec, 1\nbuffer_store_dwordx4 v[12:15], v7, s[32:35], s50 offen sc1\ns_mov_b64 exec, -1")
        a(f"s_and_b32 s50, s50, {hx(~((8 << MLS) - 1))}\nv_and_b32 v7, 7, v0\nv_lshlrev_b32 v7, {MLS}, v7")
        if s.ctl:
            a("v_bfe_u32 v6, v0, 3, 1\nv_lshl_add_u32 v7, v6, 4, v7")
        a(f"s_mov_b32 s29, {s.spin_g}")
        s.pad("k2", inline=True)
        if "noml" in opts:
            a("v_mov_b32 v64, v12\nv_mov_b32 v66, v14\ns_nop 4\ns_branch L_mlok")
        if "mlw" in opts:
            a("s_waitcnt vmcnt(0)")
        a("L_mlpoll:")
        a("buffer_load_dwordx4 v[64:67], v7, s[32:35], s50 offen sc1\ns_sub_u32 s29, s29, 1\ns_cbranch_scc1 L_end\ns_waitcnt vmcnt(0)")
        a("v_xor_b32 v68, s28, v65\nv_xor_b32 v69, s28, v67\nv_or_b32 v68, v68, v69\nv_cmp_ne_u32 vcc, 0, v68\ns_cbranch_vccnz L_mlpoll")
        a("L_mlok:")
        M8 = ("quad_perm:[1,0,3,2]", "quad_perm:[2,3,0,1]", "row_half_mirror")
        a("v_mov_b32 v12, v64")
        s.dpp_red("v_max_f32", [12], M8)
        a("v_sub_f32 v14, v64, v12\nv_mul_f32 v14, s54, v14\nv_exp_f32 v14, v14\nv_mul_f32 v14, v14, v66")
        if s.ctl:
            a("v_subrev_u32 v15, s56, v64\nv_cvt_f32_i32 v15, v15")
            s.dpp_red("v_add_f32", [14, 15], M8)
            a("v_readfirstlane_b32 s58, v12\nv_readfirstlane_b32 s59, v14\nv_cvt_i32_f32 v15, v15\nv_mov_b32 v12, s58\nv_mov_b32 v14, s59\nv_readlane_b32 s57, v15, 8")
            g = s.ctl
            a(f"s_abs_i32 s58, s57\ns_mul_i32 s58, s58, {g}\ns_cmp_lt_i32 s57, 0\ns_cselect_b32 s59, 3, 1\ns_cselect_b32 s60, 9, 8\ns_lshr_b32 s58, s58, s60")
            a("s_cmp_gt_u32 s58, 24\ns_cselect_b32 s60, 1, 0\ns_add_u32 s59, s59, s60\ns_lshr_b32 s58, s58, s60\ns_add_u32 s58, s58, 38")
            a("v_mov_b32 v6, s59\nv_mov_b32 v7, s58\nds_write_b64 v1, v[6:7] offset:40")
        else:
            s.dpp_red("v_add_f32", [14], M8)
        a("v_rcp_f32 v4, v14")
        exps()
        a("v_fma_f32 v15, -v14, v4, 1.0\nv_fma_f32 v4, v15, v4, v4\nv_mov_b32 v5, v4")
        for r in range(0, 16, 2):
            a(f"v_pk_mul_f32 v[{64+r}:{65+r}], v[{64+r}:{65+r}], v[4:5]")
        for r in range(8):
            a(f"v_cvt_pk_bf16_f32 v{80+r}, v{64+2*r}, v{65+2*r}")
        a(f"v_lshlrev_b32 v7, 6, v2\nv_lshl_add_u32 v7, v3, 4, v7\nv_add_u32 v7, {L_P}, v7\nv_mov_b32 v12, 1")
        a("ds_write_b128 v7, v[84:87]\nds_write_b128 v7, v[80:83] offset:1024\nds_write_b32 v1, v12 offset:32")
        s.TS(6)
        a("s_branch L_vphase")

    def helpers(s):
        a, opts = s.a, s.opts
        for k in range(1, len(s.NS)):
            s.pad(f"b{k}")
            s.body(k, s.NS[k])
            a("s_branch L_next")
        s.pad("c0")
        a("L_w5:\ns_endpgm")
        s.pad("h0")
        a("L_w3a:")
        s.zero_ts()
        s.cons_setup()
        for r in range(4):
            a(f"v_mov_b32 v{8+r}, {hx(SENT)}")
        assert WS_END - WS_H1 == 256 * 3072
        a(f"v_lshlrev_b32 v4, 4, v0\ns_mul_i32 s48, s2, 3072\ns_add_u32 s48, s48, {WS_H1}")
        if "noclr" not in opts:
            for k in range(3):
                a(f"buffer_store_dwordx4 v[8:11], v4, s[32:35], s48 offen offset:{k*1024} sc1")
        a("s_branch @CHAIN_C@")
        a("L_w3b:")
        a("s_waitcnt vmcnt(0) lgkmcnt(0)")
        s.tag()
        a(f"v_mov_b32 v8, s28\nv_mov_b32 v4, 0\ns_and_b32 s48, s2, 63\ns_lshl_b32 s48, s48, 7\ns_lshr_b32 s49, s2, 6\ns_lshl_b32 s49, s49, 2\ns_add_u32 s48, s48, s49\ns_add_u32 s48, s48, {WS_CL}")
        a("s_mov_b64 exec, 1\nbuffer_store_dword v8, v4, s[32:35], s48 offen sc1\ns_mov_b64 exec, -1")
        a("s_branch L_vwait")
        s.pad("h1")
        a("L_w4b:")
        s.zero_ts()
        s.cons_setup()
        s.lds_wait_gt(0, "20", 31, 7, cached=False)
        s.tag()
        a(f"v_lshlrev_b32 v4, 7, v0\ns_mov_b32 s48, {WS_CL}\ns_mov_b32 s29, {s.spin_g}")
        a("L_clpoll:")
        a("buffer_load_dwordx4 v[8:11], v4, s[32:35], s48 offen sc1\ns_sub_u32 s29, s29, 1\ns_cbranch_scc1 L_end\ns_waitcnt vmcnt(0)")
        a("v_xor_b32 v8, s28, v8\nv_xor_b32 v9, s28, v9\nv_xor_b32 v10, s28, v10\nv_xor_b32 v11, s28, v11\nv_or3_b32 v8, v8, v9, v10\nv_or_b32 v8, v8, v11")
        a("v_cmp_ne_u32 vcc, 0, v8\ns_cbranch_vccnz L_clpoll")

    def vphase(s):
        a, opts = s.a, s.opts
        a("L_vwait:")
        if "tailonly" not in opts:
            s.lds_wait_gt(32, "0", 31, 7, cached=False)
        a("s_mov_b32 s31, 0")
        s.pad("v0", inline=True)
        a("L_vphase:")
        a("v_lshrrev_b32 v4, 2, v0\nv_and_b32 v5, 7, v4\nv_lshlrev_b32 v4, 9, v4\nv_and_b32 v6, 3, v0\nv_lshl_add_u32 v4, v6, 3, v4")
        a("s_lshl_b32 s50, s30, 2\nv_xor_b32 v5, s50, v5\nv_lshl_add_u32 v8, v5, 5, v4")
        for j in range(1, 4):
            a(f"v_xor_b32 v{8+j}, {32*j}, v8")
        a(f"v_lshlrev_b32 v16, 4, v3\nv_lshl_add_u32 v18, v2, 6, v16\nv_add_u32 v16, {L_P}, v16\nv_add_u32 v17, s50, v1")
        a(f"s_lshl_b32 s49, s2, 10\ns_lshl_b32 s50, s30, 8\ns_add_u32 s49, s49, s50\ns_add_u32 s49, s49, {WS_H1}")
        for j in range(4):
            a(f"v_cmp_eq_u32 s[{56+2*j}:{57+2*j}], {j}, v2\nv_mov_b32 v{48+j}, 0")
        a(f"s_mov_b32 s48, 32\ns_mov_b32 s55, {(32 % RING) * 16384}")
        if "tailonly" in opts:
            a("v_mov_b32 v48, 1.0\nv_mov_b32 v49, -1.0\nv_mov_b32 v50, 0.5\nv_mov_b32 v51, 1.0")
            a("s_add_u32 s56, s64, 1024\ns_and_b32 s56, s56, 0xfffff800\ns_add_u32 s56, s56, 2048")
            if s.kw.get("stag"):
                a(f"s_mul_i32 s57, s2, 181\ns_and_b32 s57, s57, 255\ns_mul_i32 s57, s57, {s.kw['stag']}\ns_lshr_b32 s57, s57, 8\ns_sub_u32 s56, s56, s57")
            a("L_t0:\ns_memrealtime s[58:59]\ns_waitcnt lgkmcnt(0)\ns_sub_u32 s57, s58, s56\ns_cmp_lt_i32 s57, 0\ns_cbranch_scc1 L_t0")
            s.TS(6)
            a("s_branch L_vend")
        a("L_v:")
        a("ds_read_b128 v[20:23], v16\nv_add_u32 v16, 64, v16")
        for j in range(4):
            a(f"v_add_u32 v{12+j}, s55, v{8+j}")
        a(f"s_add_u32 s55, s55, 16384\ns_cmp_eq_u32 s55, {RINGB}\ns_cselect_b32 s55, 0, s55\ns_waitcnt lgkmcnt(0)")
        for j in range(4):
            for r in range(4):
                a(f"v_cndmask_b32 v{64+4*j+r}, 0, v{20+r}, s[{56+2*j}:{57+2*j}]")
        s.lds_wait_gt(0, "s48", 31, 7)
        for j in range(4):
            for hh in range(2):
                d = 32 + 4 * j + 2 * hh
                a(f"ds_read_b64_tr_b16 v[{d}:{d+1}], v{12+j} offset:{hh*8192}")
        a("s_add_u32 s48, s48, 1\nv_mov_b32 v7, s48")
        for j in range(4):
            a(f"s_waitcnt lgkmcnt({6-2*j})")
            a(f"v_mfma_f32_16x16x32_bf16 v[48:51], v[{32+4*j}:{35+4*j}], v[{64+4*j}:{67+4*j}], v[48:51]")
        a("ds_write_b32 v17, v7 offset:16")
        a("s_cmp_lt_u32 s48, 64\ns_cbranch_scc1 L_v")
        a("L_vend:")
        a("s_mov_b32 exec_lo, 0x000f000f\ns_mov_b32 exec_hi, 0x000f000f")
        a("buffer_store_dwordx4 v[48:51], v18, s[32:35], s49 offen sc1")
        a("s_mov_b64 exec, -1")
        s.TS(8)
        a("s_cmp_ge_u32 s2, 224\ns_cbranch_scc1 L_idle")
        a("s_bitcmp0_b32 s2, 2\ns_cbranch_scc1 L_ffn")
    def oproj(s):
        a, opts = s.a, s.opts
        a("v_lshrrev_b32 v5, 2, v0\nv_lshlrev_b32 v5, 7, v5\nv_and_b32 v6, 3, v0\nv_lshl_add_u32 v5, v6, 3, v5")
        a(f"v_bfe_u32 v6, v0, 3, 2\nv_xor_b32 v6, s30, v6\nv_lshl_add_u32 v5, v6, 5, v5")
        a("v_lshrrev_b32 v8, 5, v0\nv_lshlrev_b32 v8, 12, v8\nv_and_b32 v9, 31, v0\nv_lshl_add_u32 v8, v9, 4, v8")
        a(f"s_lshr_b32 s50, s30, 1\ns_lshl_b32 s48, s50, 4\ns_and_b32 s51, s2, 3\ns_lshl_b32 s51, s51, 2\ns_bfe_u32 s52, s2, 0x20003\ns_add_u32 s51, s51, s52\ns_add_u32 s48, s48, s51\ns_lshl_b32 s48, s48, 13\ns_and_b32 s52, s30, 1\ns_lshl_b32 s53, s52, 9\ns_add_u32 s48, s48, s53\ns_add_u32 s48, s48, {WS_H1}")
        a("v_lshrrev_b32 v10, 3, v9\nv_lshlrev_b32 v10, 6, v10\nv_and_b32 v11, 3, v9\nv_lshl_add_u32 v10, v11, 4, v10\nv_bfe_u32 v11, v9, 2, 1\nv_lshl_add_u32 v10, v11, 3, v10")
        a(f"v_lshrrev_b32 v11, 5, v0\nv_lshl_add_u32 v10, v11, 2, v10\ns_lshl_b32 s53, s30, 8\ns_add_u32 s53, s53, {L_O}\nv_add_u32 v10, s53, v10")
        a(f"v_and_b32 v11, 1, v0\nv_lshlrev_b32 v12, 9, v11\nv_lshl_add_u32 v12, v3, 4, v12\nv_add_u32 v12, {L_O}, v12")
        a("v_lshlrev_b32 v13, 6, v11\nv_lshl_add_u32 v13, v3, 4, v13")
        a(f"s_mul_i32 s49, s51, 3584\ns_lshr_b32 s53, s2, 5\ns_lshl_b32 s53, s53, 2\ns_add_u32 s53, s53, s30\ns_lshl_b32 s53, s53, 7\ns_add_u32 s49, s49, s53\ns_add_u32 s49, s49, {WS_H2}")
        s.pad("o0", inline=True)
        late = "olate" in opts

        def wfrags():
            for t in range(8):
                for hh in range(2):
                    d = 64 + 4 * t + 2 * hh
                    a(f"ds_read_b64_tr_b16 v[{d}:{d+1}], v5 offset:{L_W+t*4096+hh*2048}")
        if not late:
            a("s_barrier")
            wfrags()
        s.TS(9)
        s.poll_sum("h1", [f"buffer_load_dwordx4 v[{32+4*k}:{35+4*k}], v8, s[32:35], s48 offen offset:{k*1024} sc1" for k in range(4)],
                   32, 16, [56, 58, 60, 62], "1", s.kw.get("D1", 1))
        s.TS(10)
        a("v_permlane32_swap_b32 v16, v18\nv_permlane32_swap_b32 v17, v19\nv_pk_add_f32 v[16:17], v[16:17], v[18:19]")
        a("v_cvt_pk_bf16_f32 v20, v16, v17")
        a("ds_write_b32 v10, v20\ns_waitcnt lgkmcnt(0)\ns_barrier")
        if late:
            wfrags()
        for t in range(8):
            a(f"ds_read_b128 v[{96+4*t}:{99+4*t}], v12 offset:{t*64}")
        for t in range(8):
            a(f"s_waitcnt lgkmcnt({7-t})")
            c = "0" if t == 0 else "v[24:27]"
            a(f"v_mfma_f32_16x16x32_bf16 v[24:27], v[{64+4*t}:{67+4*t}], v[{96+4*t}:{99+4*t}], {c}")
        a("s_mov_b32 exec_lo, 0x00030003\ns_mov_b32 exec_hi, 0x00030003")
        a("buffer_store_dwordx4 v[24:27], v13, s[32:35], s49 offen sc1")
        s.TS(11)
        a("s_branch L_fin")

    def ffn(s):
        a, opts = s.a, s.opts
        P = lambda r: f"v[{r}:{r+1}]"
        s.pad("f0")
        a("L_ffn:")
        s.srd(40, 4, 1792)
        s.srd(44, 22, 1792)
        s.ffn_index(52)
        a("v_lshrrev_b32 v8, 5, v0\nv_and_b32 v9, 31, v0\nv_cmp_gt_u32 vcc, 28, v9")
        a(f"v_mul_u32_u24 v10, 896, v8\nv_lshl_add_u32 v10, v9, 3, v10\ns_mul_i32 s50, s30, 224\nv_add_u32 v10, s50, v10\nv_mov_b32 v11, {OOB}\nv_cndmask_b32 v10, v11, v10, vcc")
        a("buffer_load_dwordx2 v[14:15], v10, s[40:43], 0 offen")
        a(f"v_lshrrev_b32 v12, 2, v9\nv_lshlrev_b32 v12, 7, v12\nv_lshl_add_u32 v12, v8, 6, v12\nv_and_b32 v6, 3, v0\nv_lshl_add_u32 v12, v6, 4, v12\nv_cndmask_b32 v40, v11, v12, vcc")
        for k in range(1, 8):
            a(f"v_add_u32 v{40+k}, {7168*k}, v40")
        a(f"s_mul_i32 s48, s30, 896\ns_add_u32 s48, s48, {WS_H2}")
        a(f"v_lshlrev_b32 v24, 5, v8\nv_add_u32 v24, {L_ST}, v24\ns_lshl_b32 s50, s30, 3\nv_add_u32 v25, s50, v24")
        a(f"s_lshl_b32 s50, s30, 9\ns_add_u32 s50, s50, {L_LN2}")
        a("v_lshrrev_b32 v26, 3, v0\nv_lshlrev_b32 v26, 6, v26\nv_lshl_add_u32 v26, v6, 4, v26\nv_bfe_u32 v11, v0, 2, 1\nv_lshl_add_u32 v26, v11, 3, v26\nv_add_u32 v26, s50, v26")
        a("v_lshlrev_b32 v27, 8, v11\nv_lshl_add_u32 v27, v3, 4, v27\nv_add_u32 v27, s50, v27")
        a(f"v_lshlrev_b32 v28, 6, v11\nv_lshl_add_u32 v28, v3, 4, v28\nv_add_u32 v29, {L_RED}, v28\ns_lshl_b32 s50, s30, 8\nv_lshl_add_u32 v31, v6, 2, v29\nv_add_u32 v29, s50, v29")
        a(f"v_lshrrev_b32 v7, 3, v2\nv_lshl_add_u32 v7, v7, 2, v6\nv_mul_u32_u24 v30, {112*128}, v7\nv_add_u32 v30, v30, v28")
        a(f"s_lshl_b32 s49, s52, 7\ns_mul_i32 s50, s30, {7*112*128}\ns_add_u32 s49, s49, s50\ns_add_u32 s49, s49, {WS_H3}")
        a(f"s_mul_i32 s50, s30, 3584\nv_lshl_add_u32 v4, v0, 3, s50")
        a(f"v_lshrrev_b32 v5, 2, v0\nv_lshlrev_b32 v13, 7, v5\nv_lshl_add_u32 v13, v6, 4, v13\nv_mul_u32_u24 v5, 896, v5\nv_lshl_add_u32 v5, v6, 3, v5\ns_mul_i32 s50, s30, 224\nv_add_u32 v5, s50, v5")
        a("v_mov_b32 v142, 0\nv_mov_b32 v143, 0\nv_mov_b32 v158, 0\nv_mov_b32 v159, 0")
        s.pad("f1", inline=True)
        late = "flate" in opts

        def wfrags():
            for m in range(7):
                a(f"ds_read_b64_tr_b16 v[{128+2*m}:{129+2*m}], v4 offset:{L_W+m*512}")
                a(f"ds_read_b64_tr_b16 v[{144+2*m}:{145+2*m}], v4 offset:{L_W+14336+m*512}")
            for m in range(7):
                a(f"ds_read_b64_tr_b16 v[{160+2*m}:{161+2*m}], v5 offset:{L_W+28672+m*32}")
        a("s_waitcnt vmcnt(0)")
        if not late:
            a("s_barrier")
            wfrags()
        a("v_lshlrev_b32 v52, 16, v14\nv_and_b32 v53, 0xffff0000, v14\nv_lshlrev_b32 v54, 16, v15\nv_and_b32 v55, 0xffff0000, v15")
        a(f"s_mov_b32 s54, {hx(f2u(1/448))}\ns_mov_b32 s96, 0\ns_mov_b32 s97, 0x80000000")
        s.TS(9)
        s.pad("f1b", inline=True)
        masks = list(range(4, 28, 2)) + [56, 58, 60, 62]
        s.poll_sum("h2", [f"buffer_load_dwordx4 v[{176+4*h}:{179+4*h}], v{40+(h>>1)}, s[32:35], s48 offen offset:{(h&1)*3584} sc1" for h in range(16)],
                   176, 16, masks, "s[96:97]", s.kw.get("D2", 1))
        s.TS(12)
        s.rnd4(16, 6, 7)
        a(f"v_pk_add_f32 {P(52)}, {P(16)}, {P(52)}\nv_pk_add_f32 {P(54)}, {P(18)}, {P(54)}")
        s.rnd4(52, 6, 7)
        a(f"v_pk_add_f32 {P(34)}, {P(52)}, {P(54)}\nv_pk_mul_f32 {P(36)}, {P(52)}, {P(52)}\nv_pk_fma_f32 {P(36)}, {P(54)}, {P(54)}, {P(36)}")
        a("v_add_f32 v32, v34, v35\nv_add_f32 v33, v36, v37")
        s.red16("v_add_f32", [32, 33])
        s.xrow("v_add_f32", [32, 33], [34, 35], 16)
        a("s_mov_b32 exec_lo, 1\ns_mov_b32 exec_hi, 1\nds_write_b64 v25, v[32:33]\ns_mov_b64 exec, -1")
        s.pad("f2", inline=True)
        a("s_waitcnt lgkmcnt(0)\ns_barrier")
        a("ds_read_b128 v[36:39], v24\nds_read_b128 v[56:59], v24 offset:16")
        if late:
            wfrags()
            a("s_waitcnt lgkmcnt(15)")
        else:
            a("s_waitcnt lgkmcnt(0)")
        a(f"v_pk_add_f32 {P(36)}, {P(36)}, {P(38)}\nv_pk_add_f32 {P(56)}, {P(56)}, {P(58)}\nv_pk_add_f32 {P(36)}, {P(36)}, {P(56)}")
        a("v_mul_f32 v36, s54, v36\nv_mul_f32 v38, s54, v37\nv_fma_f32 v38, -v36, v36, v38\nv_max_f32 v38, 0, v38")
        a("v_cvt_pk_bf16_f32 v6, v36, v38\nv_and_b32 v38, 0xffff0000, v6\nv_lshlrev_b32 v36, 16, v6\nv_lshlrev_b32 v37, 16, v6")
        a(f"v_add_f32 v38, {hx(f2u(1e-5))}, v38")
        a(f"v_pk_add_f32 {P(16)}, {P(52)}, {P(36)} neg_lo:[0,1] neg_hi:[0,1]")
        s.rnd1(38)
        a("v_sqrt_f32 v38, v38")
        a(f"v_pk_add_f32 {P(18)}, {P(54)}, {P(36)} neg_lo:[0,1] neg_hi:[0,1]")
        s.rnd1(38)
        a("v_rcp_f32 v38, v38")
        s.rnd4(16, 6, 7)
        a(f"v_pk_mul_f32 {P(16)}, {P(16)}, {P(38)} op_sel_hi:[1,0]\nv_pk_mul_f32 {P(18)}, {P(18)}, {P(38)} op_sel_hi:[1,0]")
        a("v_cvt_pk_bf16_f32 v20, v16, v17\nv_cvt_pk_bf16_f32 v21, v18, v19")
        a("ds_write_b64 v26, v[20:21]")
        for t in range(4):
            a(f"ds_read_b128 v[{64+4*t}:{67+4*t}], v27 offset:{t*64}")
        k0 = -2 * math.sqrt(2 / math.pi) * math.log2(math.e)
        a(f"s_mov_b32 s54, {hx(f2u(k0*0.044715))}\nv_mov_b32 v6, {hx(f2u(k0))}")
        for j in range(7):
            m = (0x0011 << ((j & 3) + 8 * (j >> 2))) * 0x10001
            a(f"s_mov_b32 s{4+2*j}, {hx(m)}\ns_mov_b32 s{5+2*j}, s{4+2*j}")
        for t in range(4):
            a(f"s_waitcnt lgkmcnt({3-t})")
            for (D, W) in ((32, 128), (36, 144)):
                c = "0" if t == 0 else f"v[{D}:{D+3}]"
                a(f"v_mfma_f32_16x16x32_bf16 v[{D}:{D+3}], v[{W+4*t}:{W+3+4*t}], v[{64+4*t}:{67+4*t}], {c}")
        s.pad("f3", inline=True)
        a("s_mov_b32 exec_lo, 0x00110011\ns_mov_b32 exec_hi, 0x00110011")
        a("ds_write_b128 v29, v[32:35]\nds_write_b128 v29, v[36:39] offset:128\ns_mov_b64 exec, -1")
        a("s_waitcnt lgkmcnt(0)\ns_barrier")
        a("ds_read2_b32 v[64:65], v31 offset0:0 offset1:64\nds_read2_b32 v[66:67], v31 offset0:128 offset1:192")
        a("ds_read2_b32 v[68:69], v31 offset0:32 offset1:96\nds_read2_b32 v[70:71], v31 offset0:160 offset1:224")
        a("s_waitcnt lgkmcnt(2)")
        a(f"v_pk_add_f32 {P(64)}, {P(64)}, {P(66)}\nv_add_f32 v64, v64, v65")
        s.rnd1(64)
        a("v_mul_f32 v65, v64, v64\nv_fma_f32 v65, v65, s54, v6\nv_mul_f32 v65, v65, v64\nv_exp_f32 v65, v65")
        a("s_waitcnt lgkmcnt(0)")
        a(f"v_pk_add_f32 {P(68)}, {P(68)}, {P(70)}\nv_add_f32 v65, 1.0, v65\nv_rcp_f32 v65, v65\nv_add_f32 v68, v68, v69")
        a("v_mul_f32 v64, v64, v65")
        s.rnd2(64, 68, 7)
        a("v_mul_f32 v64, v64, v68")
        for r in range(4):
            a(f"v_mov_b32_dpp v{72+r}, v64 quad_perm:[{r},{r},{r},{r}] {DPPM}")
        a("v_cvt_pk_bf16_f32 v20, v72, v73\nv_cvt_pk_bf16_f32 v21, v74, v75")
        for j in range(9):
            if j < 7:
                a(f"v_cndmask_b32 v{96+2*j}, 0, v20, s[{4+2*j}:{5+2*j}]\nv_cndmask_b32 v{97+2*j}, 0, v21, s[{4+2*j}:{5+2*j}]")
            if 1 <= j <= 7:
                jj = j - 1
                c = "0" if jj == 0 else "v[32:35]"
                a(f"v_mfma_f32_16x16x16_bf16 v[32:35], v[{160+2*jj}:{161+2*jj}], v[{96+2*jj}:{97+2*jj}], {c}")
        a("s_lshr_b32 s50, s2, 3\ns_lshl_b32 s50, s50, 2\ns_and_b32 s51, s2, 3\ns_add_u32 s50, s50, s51\ns_lshr_b32 s51, s50, 1\ns_mul_i32 s52, s30, 7\ns_sub_u32 s52, s51, s52\ns_and_b32 s53, s50, 1")
        a("s_mov_b32 exec_lo, 0x77ff77ff\ns_mov_b32 exec_hi, 0x77ff77ff")
        a("buffer_store_dwordx4 v[32:35], v30, s[32:35], s49 offen sc1")
        a("s_mov_b64 exec, -1")
        s.TS(13)
        a("s_cmp_ge_u32 s52, 7\ns_cbranch_scc1 L_fin")
        a(f"s_mul_i32 s4, s51, {112*128}\ns_lshl_b32 s5, s53, 6\ns_add_u32 s4, s4, s5\ns_add_u32 s4, s4, {WS_H3}")
        a("s_add_u32 s5, s4, 4096\ns_add_u32 s6, s4, 8192\ns_add_u32 s7, s4, 12288")
        a("s_lshl_b32 s52, s52, 2\ns_lshl_b32 s53, s53, 5\ns_add_u32 s52, s52, s53\ns_lshl_b64 s[8:9], 15, s52")
        s.pad("f4", inline=True)
        if "nofw" not in opts:
            a("s_waitcnt vmcnt(0)")
        s.poll_sum("h3", [f"buffer_load_dwordx4 v[{64+4*k}:{67+4*k}], v13, s[32:35], s{4+(k>>1)} offen offset:{(k&1)*2048} sc1" for k in range(7)],
                   64, 16, list(range(10, 24, 2)), "1", s.kw.get("D3", 1))
        s.TS(10)
        rs = [16, 17, 18, 19]
        s.dpp_red("v_add_f32", rs, ("row_ror:4", "row_ror:8"))
        s.xrow("v_add_f32", rs, [20, 21, 22, 23], 16)
        s.xrow("v_add_f32", rs, [20, 21, 22, 23], 32)
        s.rnd4(16, 6, 7)
        a(f"v_pk_add_f32 {P(16)}, {P(16)}, {P(52)}\nv_pk_add_f32 {P(18)}, {P(18)}, {P(54)}")
        a("v_cvt_pk_bf16_f32 v20, v16, v17\nv_cvt_pk_bf16_f32 v21, v18, v19")
        a("s_mov_b64 exec, s[8:9]\nbuffer_store_dwordx2 v[20:21], v10, s[44:47], 0 offen")
        s.TS(14)
        a("s_cmp_lg_u32 s50, 0\ns_cbranch_scc1 L_fin")
        a(f"s_mov_b64 exec, 1\nv_mov_b32 v8, s28\nv_mov_b32 v4, {WS_EPOCH}\nbuffer_store_dword v8, v4, s[32:35], 0 offen sc1")
        a("s_branch L_fin")
        s.pad("end")
        a("L_idle:\ns_barrier")
        a("L_fin:")
        s.TS_store()
        a("L_end:\ns_endpgm")

    def build(s):
        s.entry()
        s.qprod()
        s.kphase()
        s.helpers()
        s.vphase()
        s.oproj()
        s.ffn()
        src = list(s.a.lines)
        cands = [l.split()[1] for l in src if l.startswith("@PAD")]
        chosen = {}
        win = {}

        def render(marks):
            n = len(chosen)
            c1 = [2] + [k for k in range(4, win.get("L_w1", 2) + 1) if k < n]
            c3 = [0] + [k for k in [win.get("L_w3a", 0)] if 3 < k < n and k not in c1]
            rest = [k for k in range(4, n) if k not in c1 and k not in c3]
            w4, w5 = win.get("L_w4b", 0), win.get("L_w5", 0)
            c5 = [3] + [k for k in rest if k <= w5]
            rest = [k for k in rest if k not in c5]
            cC = [k for k in rest[1::2] if k != w4]
            cD = [1] + [k for k in rest if k not in cC]
            nxt = {}
            for c, end in ((c1, "L_w1"), (c3, "L_w3a"), (cC, "L_w3b"), (cD, "L_w4b"), (c5, "L_w5")):
                for q, p in enumerate(c):
                    nxt[p] = ("s_barrier\n" if p < 4 else "") + "s_branch " + (f"P_{c[q+1]}" if q + 1 < len(c) else end)
            A = Asm()
            for l in src:
                if l.startswith("@PAD"):
                    _, name, inl = l.split()
                    if marks:
                        A(f"M_{name}:")
                    if name in chosen:
                        k, fill = chosen[name]
                        if inl == "1":
                            A(f"s_branch L_over{k}")
                        if fill:
                            A(f".fill {fill}, 4, 0xbf800000")
                        A(f"P_{k}:\n{nxt[k]}")
                        if inl == "1":
                            A(f"L_over{k}:")
                    continue
                A(l.replace("@CHAIN_C@", f"P_{cC[0]}" if cC else "L_w3b"))
            for k in range(n, 4):
                A(f"P_{k}:\ns_endpgm")
            return A

        def addrs(A):
            open("_g.s", "w").write('.amdgcn_target "amdgcn-amd-amdhsa--gfx950"\n.text\n' + A.text())
            subprocess.run(["clang", "-x", "assembler", "-target", "amdgcn-amd-amdhsa", "-mcpu=gfx950", "-c", "_g.s", "-o", "_g.o"], check=True)
            o = subprocess.run(["llvm-objdump", "-t", "_g.o"], capture_output=True, text=True).stdout
            return {l.split()[-1]: int(l.split()[0], 16) for l in o.splitlines() if " .text" in l and len(l.split()) > 3}
        end = 512
        last = -1
        while True:
            ad = addrs(render(True))
            if ad["L_end"] + 4 <= end:
                break
            ok = [q for q, c in enumerate(cands) if q > last and ad["M_" + c] + 4 <= end]
            assert ok, f"no pad candidate before {end}"
            last = ok[-1]
            c = cands[last]
            inl = [l for l in src if l.startswith(f"@PAD {c} ")][0].endswith("1")
            chosen[c] = (len(chosen), (end - ad["M_" + c] - (4 if inl else 0)) // 4)
            end += 1088
        for x in ("L_w1", "L_w3a", "L_w4b", "L_w5"):
            win[x] = (ad[x] - 512) // 1088
        s.a = render(False)
        ad = addrs(s.a)
        for c, (k, fill) in chosen.items():
            assert ad[f"P_{k}"] == 512 + 1088 * k, (c, k, ad[f"P_{k}"])
        print("pads:", " ".join(f"{c}({fill*4})" for c, (k, fill) in chosen.items()), "size", ad["L_end"], file=sys.stderr)
        hdr = open("cdna_kernels/" + NAME + ".s.ref").read().split("; Override launch")[0]
        head = hdr + f"; @launch grid=(256,1,1) block=(384,1,1) lds={LDS_BYTES}\n"
        head += f'.amdgcn_target "amdgcn-amd-amdhsa--gfx950"\n.text\n.globl {NAME}_kernel\n.p2align 8\n.type {NAME}_kernel,@function\n'
        nv = 240
        tail = f""".section .rodata,"a"
.p2align 6
.amdhsa_kernel {NAME}_kernel
  .amdhsa_next_free_vgpr {nv}
  .amdhsa_next_free_sgpr 102
  .amdhsa_accum_offset {nv}
  .amdhsa_group_segment_fixed_size 0
  .amdhsa_kernarg_size 96
  .amdhsa_user_sgpr_count 2
  .amdhsa_user_sgpr_kernarg_segment_ptr 1
  .amdhsa_system_sgpr_workgroup_id_x 1
  .amdhsa_float_denorm_mode_32 3
.end_amdhsa_kernel
"""
        return head + s.a.text() + tail


if __name__ == "__main__":
    out = sys.argv[1]
    kw, opts = {}, []
    for x in sys.argv[2:]:
        if x == "ts":
            kw["ts"] = True
        elif "=" in x:
            kw[x.split("=")[0]] = int(x.split("=")[1])
        else:
            opts.append(x)
    open(out, "w").write(G(opts=tuple(opts), **kw).build())
```
